```python
import torch

def _softmax(x, axis=-1):
    return torch.softmax(x, dim=axis)
def _gelu(x):
    return torch.nn.functional.gelu(x, approximate="tanh")
def _silu(x):
    return torch.nn.functional.silu(x)
def _sigmoid(x):
    return torch.sigmoid(x)
def _layernorm(x, axis=-1, eps=1e-5):
    m = x.mean(dim=axis, keepdim=True)
    v = x.var(dim=axis, keepdim=True, unbiased=False)
    return (x - m) / torch.sqrt(v + eps)
def _scatter_add(tgt, idx, src, axis=0):
    return tgt.clone().index_add_(axis, idx, src)
def _segment_sum(src, seg, n):
    out = torch.zeros((n,) + src.shape[1:], dtype=src.dtype)
    return out.index_add_(0, seg, src)
def _pad(x, pw):
    flat = tuple(v for pair in reversed(pw) for v in pair)
    return torch.nn.functional.pad(x, flat)

kernel_name = 'standalone__normalfloat_lut_nf4__prompt'

def setup_inputs():

    _w = (lambda a: (lambda t: t.to(torch.bfloat16) if t.is_floating_point() else t)(torch.as_tensor(a)))
    B, S, D, F = 1, 2048, 576, 4608
    G = -1 if -1 > 0 else D
    D = (D // G) * G
    ng = D // G
    qw = torch.randint(0, 16, (D, F)).to(torch.int64)
    return {
        "x": _w((lambda *s: torch.randn(*s, dtype=torch.bfloat16) * 0.05)(B, S, D)),
        "qw": _w(qw),
        "absmax": _w(torch.abs((lambda *s: torch.randn(*s, dtype=torch.bfloat16) * 0.05)(ng, F)).to(float) + 0.01),
    }

def reference(x, qw, absmax):
    NF4 = torch.as_tensor([
        -1.0, -0.6961928009986877, -0.5250730514526367, -0.39491748809814453,
        -0.28444138169288635, -0.18477343022823334, -0.09105003625154495, 0.0,
        0.07958029955625534, 0.16093020141124725, 0.24611230194568634,
        0.33791524171829224, 0.44070982933044434, 0.5626170039176941,
        0.7229568362236023, 1.0,
    ])
    D, F = qw.shape[0], qw.shape[1]
    ng = absmax.shape[0]
    G = D // ng
    w = (lambda x, dt: x.to(dt))(NF4[qw], x.dtype)
    s = (lambda x, n, axis: torch.repeat_interleave(x, n, dim=axis))(absmax, G, axis=0)
    w = w * s
    return torch.einsum("bsd,df->bsf", x, w)
```

```python
import sys, struct
KN="standalone__normalfloat_lut_nf4__prompt_kernel"
M,N,K=2048,4608,576
NF4=[-1.0,-0.6961928009986877,-0.5250730514526367,-0.39491748809814453,-0.28444138169288635,-0.18477343022823334,-0.09105003625154495,0.0,
     0.07958029955625534,0.16093020141124725,0.24611230194568634,0.33791524171829224,0.44070982933044434,0.5626170039176941,0.7229568362236023,1.0]
def f2bf(f):
    u=struct.unpack('<I',struct.pack('<f',f))[0]
    return ((u+0x7fff+((u>>16)&1))>>16)&0xffff
T16=[f2bf(v) for v in NF4]
def perm_byte(tab8,sel):
    if sel>=13: return 0xff
    if sel==12: return 0
    if sel>=8: return 0xff if tab8[2*(sel-8)+1]&0x80 else 0
    return tab8[sel]
def xor_tables(T):
    A=[0]*8;B=[0]*8
    for _ in range(8):
        for q in range(8):
            A[q]=T[q]^perm_byte(B,q+8)
            B[q]=T[q+8]^perm_byte(A,q+8)
    for q in range(16):
        assert perm_byte(A,q)^perm_byte(B,q^8)==T[q]
    return A,B
def dw(b): return b[0]|b[1]<<8|b[2]<<16|b[3]<<24

class Asm:
    def __init__(s): s.l=[]
    def __call__(s,x): s.l.append(" "+x)
    def lab(s,x): s.l.append(x+":")
    def txt(s): return "\n".join(s.l)+"\n"

def gen(P=8, stflags="sc0 sc1", stamps=False, sched=None, NXB=6):
    assert P%2==0
    a=Asm()
    XI=P//2
    XS=P*2048
    WS0=3*XS
    PA=WS0+2*16384
    PB=PA+36864
    LDS=PB+36864
    assert LDS<=163840
    pslots=[PA,PB,0,36864]
    assert 73728<=PA
    NT2=19-P
    NPAIR=(18-P)//2
    if stamps: a("s_memrealtime s[90:91]"); a("s_memtime s[88:89]")
    a("s_load_dwordx4 s[4:7], s[0:1], 0")
    a("s_load_dwordx4 s[8:11], s[0:1], 16")
    if stamps: a("s_load_dwordx2 s[14:15], s[0:1], 40")
    a("s_cmp_ge_u32 s2, 252")
    a("s_cbranch_scc1 L_end")
    a("v_lshrrev_b32 v2, 6, v0")
    a("v_and_b32 v1, 63, v0")
    a("s_and_b32 s30, s2, 7")
    a("v_readfirstlane_b32 s50, v2")
    a("s_lshr_b32 s31, s2, 3")
    a("s_lshl_b32 s34, s30, 5")
    a("s_sub_u32 s35, s30, 4")
    a("s_max_i32 s35, s35, 0")
    a("s_sub_u32 s34, s34, s35")
    a("s_add_u32 s34, s34, s31")
    a("s_mul_i32 s35, s34, 9363")
    a("s_lshr_b32 s35, s35, 16")
    a("s_mul_i32 s36, s35, 7")
    a("s_sub_u32 s36, s34, s36")
    a("s_mul_i32 s37, s36, 18")
    a("s_min_u32 s38, s36, 2")
    a("s_add_u32 s37, s37, s38")
    a("s_mov_b32 s18, %d"%(M*K*2)); a("s_mov_b32 s19, 0x20000")
    a("s_mov_b32 s22, %d"%(K*N*4)); a("s_mov_b32 s23, 0x20000")
    a("s_mov_b32 s26, %d"%(M*N*2)); a("s_mov_b32 s27, 0x20000")
    a("s_mov_b32 s42, %d"%(N*2)); a("s_mov_b32 s43, 0x20000")
    a("s_cmp_ge_u32 s50, 4")
    a("s_cbranch_scc1 L_prod")
    nst=[0]
    def stamp():
        if stamps:
            assert nst[0]<14
            a("s_memtime s[%d:%d]"%(60+2*nst[0],61+2*nst[0])); nst[0]+=1
    def stamp_out(tag):
        if not stamps: return
        a("s_memrealtime s[92:93]")
        a("s_waitcnt vmcnt(0) lgkmcnt(0)")
        a("s_mov_b32 s44, s14"); a("s_mov_b32 s45, s15"); a("s_mov_b32 s46, 0x10000000"); a("s_mov_b32 s47, 0x20000")
        for i in range(14):
            if i<nst[0]: a("s_sub_u32 s%d, s%d, s88"%(60+2*i,60+2*i)); a("v_mov_b32 v%d, s%d"%(16+i,60+2*i))
            else: a("v_mov_b32 v%d, 0"%(16+i))
        a("v_mov_b32 v30, s90"); a("v_mov_b32 v31, s92")
        a("s_lshl_b32 s48, s2, 3"); a("s_add_u32 s48, s48, s50"); a("s_lshl_b32 s48, s48, 6")
        a("v_mov_b32 v12, s48")
        a("v_cmp_eq_u32 vcc, 0, v1")
        a("s_and_saveexec_b64 s[48:49], vcc")
        for i in range(4): a("buffer_store_dwordx4 v[%d:%d], v12, s[44:47], 0 offen offset:%d"%(16+4*i,19+4*i,16*i))
    XA0,XA1,WA,SC0,SC1=2,3,4,5,6
    OA=[8,9,10,11]
    XB0=16
    ACC0=XB0+4*NXB
    W0=112
    assert ACC0+(P+1)*8<=W0
    def wreg(s,t): r=W0+(2*s+t)*4; return "v[%d:%d]"%(r,r+3)
    def xb(i): r=XB0+4*(i%NXB); return "v[%d:%d]"%(r,r+3)
    def acc(slot,t): r=ACC0+slot*8+4*t; return "v[%d:%d]"%(r,r+3)
    a("v_and_b32 v12, 15, v1")
    a("v_lshrrev_b32 v13, 4, v1")
    a("s_lshl_b32 s39, s35, 8")
    a("s_lshl_b32 s51, s50, 6")
    a("s_add_u32 s39, s39, s51")
    a("v_lshlrev_b32 v14, 2, v12")
    a("v_add_u32 v14, s39, v14")
    a("s_waitcnt lgkmcnt(0)")
    a("s_mov_b32 s40, s8"); a("s_mov_b32 s41, s9")
    a("s_mov_b32 s24, s10"); a("s_mov_b32 s25, s11")
    a("buffer_load_dword v7, v14, s[40:43], 0 offen")
    a("v_lshrrev_b32 v15, 1, v12")
    a("v_xor_b32 v15, v15, v13")
    a("v_lshlrev_b32 v15, 4, v15")
    a("v_lshl_add_u32 v%d, v12, 7, v15"%XA0)
    a("v_xor_b32 v%d, 64, v%d"%(XA1,XA0))
    a("v_and_b32 v15, 1, v12")
    a("v_lshlrev_b32 v15, 3, v15")
    a("v_lshl_add_u32 v15, v13, 4, v15")
    a("v_lshrrev_b32 v%d, 1, v12"%WA)
    a("v_add_u32 v15, v15, v%d"%WA)
    a("s_lshl_b32 s51, s50, 11")
    a("s_add_u32 s51, s51, %d"%WS0)
    a("v_lshlrev_b32 v15, 4, v15")
    a("v_add_u32 v%d, s51, v15"%WA)
    a("s_mul_i32 s52, s37, %d"%(16*9216))
    a("s_mov_b32 s53, %d"%(4*9216))
    a("v_mul_lo_u32 v15, v13, s53")
    a("v_add3_u32 v%d, v15, v14, s52"%OA[0])
    for r in range(1,4): a("v_add_u32 v%d, %d, v%d"%(OA[r],9216*r,OA[0]))
    a("s_waitcnt vmcnt(0)")
    a("v_lshlrev_b32 v%d, 16, v7"%SC0)
    a("v_and_b32 v%d, 0xffff0000, v7"%SC1)
    for c in range(9):
        a("s_barrier")
        if c in (0,1,4,8): stamp()
        xs=(c%3)*XS; ws=(c%2)*16384
        items=[(s,t) for s in range(2) for t in range(P)]
        q=[]
        def rdw(s,t):
            a("ds_read_b128 %s, v%d offset:%d"%(wreg(2*c+s,t),WA,ws+(s*8+t)*1024)); q.append(("w",s,t))
        def rdx(n):
            s,t=items[n]
            a("ds_read_b128 %s, v%d offset:%d"%(xb(n),XA1 if s else XA0,xs+t*2048)); q.append(("x",n))
        rdw(0,0); rdx(0); rdw(0,1)
        for n in range(1,NXB): rdx(n)
        rdw(1,0); rdw(1,1)
        for n,(s,t) in enumerate(items):
            need=[("x",n),("w",s,0),("w",s,1)]
            last=max(q.index(x) for x in need if x in q) if any(x in q for x in need) else -1
            if last>=0:
                a("s_waitcnt lgkmcnt(%d)"%(len(q)-1-last)); del q[:last+1]
            for tt in range(2):
                src="0" if (c==0 and s==0) else acc(t,tt)
                a("v_mfma_f32_16x16x32_bf16 %s, %s, %s, %s"%(acc(t,tt),xb(n),wreg(2*c+s,tt),src))
            if n+NXB<len(items): rdx(n+NXB)
        assert not q
    def epi_ops(slot,tile):
        ops=[]
        b=ACC0+slot*8
        for r in range(4):
            ops.append("v_mul_f32 v%d, v%d, v%d"%(b+r,b+r,SC0))
            ops.append("v_mul_f32 v%d, v%d, v%d"%(b+4+r,b+4+r,SC1))
        for r in range(4):
            ops.append("v_cvt_pk_bf16_f32 v%d, v%d, v%d"%(b+r,b+r,b+4+r))
        ops.append("s_mov_b32 s54, %d"%(tile*16*9216))
        for r in range(4):
            ops.append("buffer_store_dword v%d, v%d, s[24:27], s54 offen %s"%(b+r,OA[r],stflags))
        return ops
    if sched is None:
        tot=18; sched=[]; done=0
        for u in range(NT2):
            want=-(-tot*(u+1)//NT2)
            want=min(want,P+u)
            sched.append(want-done); done=want
    pend=[(t,t) for t in range(P)]
    free=[P]
    curbase=0
    def tile_body(u,slot,lbase,fill):
        q=[]
        def rdx(n):
            a("ds_read_b128 %s, v%d offset:%d"%(xb(n),XA1 if n&1 else XA0,lbase+(n>>1)*2048)); q.append(n)
        for n in range(NXB): rdx(n)
        fi=0
        for n in range(18):
            last=q.index(n)
            a("s_waitcnt lgkmcnt(%d)"%(len(q)-1-last)); del q[:last+1]
            for tt in range(2):
                src="0" if n==0 else acc(slot,tt)
                a("v_mfma_f32_16x16x32_bf16 %s, %s, %s, %s"%(acc(slot,tt),xb(n),wreg(n,tt),src))
                if tt==0 and n>=2:
                    tgt=-(-len(fill)*(n-1)//16)
                    if fi<tgt: a(fill[fi]); fi+=1
            if n+NXB<18: rdx(n+NXB)
            if n>=2:
                tgt=-(-len(fill)*(n-1)//16)
                while fi<tgt: a(fill[fi]); fi+=1
        assert fi==len(fill)
    for u in range(NT2):
        pj=u//2
        if u==NT2-1:
            a("s_cmp_ge_u32 s36, 2")
            a("s_cbranch_scc1 L_c_end18")
            pend18=list(pend)
        if u%2==0:
            nb_=pslots[pj%4]
            d=nb_-curbase
            if d>0:
                a("v_add_u32 v%d, %d, v%d"%(XA0,d,XA0)); a("v_add_u32 v%d, %d, v%d"%(XA1,d,XA1))
            elif d<0:
                a("v_subrev_u32 v%d, %d, v%d"%(XA0,-d,XA0)); a("v_subrev_u32 v%d, %d, v%d"%(XA1,-d,XA1))
            curbase=nb_
            a("s_barrier")
            stamp()
        slot=free.pop(0)
        fill=[]
        for _ in range(sched[u]):
            sl,tl=pend.pop(0); fill+=epi_ops(sl,tl); free.append(sl)
        tile_body(u,slot,(u%2)*18432,fill)
        pend.append((slot,P+u))
    a("s_nop 7")
    for sl,tl in pend:
        for o in epi_ops(sl,tl): a(o)
    sv=nst[0]
    stamp()
    a("s_branch L_c_done")
    a.lab("L_c_end18")
    a("s_nop 7")
    for sl,tl in pend18:
        for o in epi_ops(sl,tl): a(o)
    if stamps:
        nst[0]=sv-1; stamp(); stamp()
    a.lab("L_c_done")
    if stamps:
        a("s_waitcnt vmcnt(0)"); stamp(); stamp_out("c")
    a("s_endpgm")
    a.lab("L_prod")
    nst[0]=0
    VQ=2; VXA=[3,4,5,6,7][:XI] if XI<=5 else None; VP=8; VW=9
    TB=16
    QS=[32,64]
    TMP=96
    a("s_sub_u32 s51, s50, 4")
    a("v_lshrrev_b32 v12, 5, v1")
    a("s_mov_b32 s53, %d"%(8*18432))
    a("v_mul_lo_u32 v12, v12, s53")
    a("v_and_b32 v13, 31, v1")
    a("v_lshl_add_u32 v12, v13, 4, v12")
    a("s_lshl_b32 s39, s35, 9")
    a("s_mul_i32 s52, s51, %d"%(16*18432))
    a("s_add_u32 s39, s39, s52")
    a("v_add_u32 v%d, s39, v12"%VQ)
    for j in range(1,8): a("s_mov_b32 s%d, %d"%(94+j-1 if False else 54+j,j*18432)) if False else None
    SJ=[None]+[94+j for j in range(7)]
    for j in range(1,8): a("s_mov_b32 s%d, %d"%(SJ[j],j*18432))
    a("s_waitcnt lgkmcnt(0)")
    a("s_mov_b32 s20, s6"); a("s_mov_b32 s21, s7")
    a("s_mov_b32 s16, s4"); a("s_mov_b32 s17, s5")
    def issue_q(st):
        L=[]
        for j in range(8):
            r=QS[st]+4*j
            L.append("buffer_load_dwordx4 v[%d:%d], v%d, s[20:23], %s offen"%(r,r+3,VQ,"0" if j==0 else "s%d"%SJ[j]))
        L.append("v_add_u32 v%d, %d, v%d"%(VQ,64*18432,VQ))
        return L
    for o in issue_q(0): a(o)
    a("v_lshrrev_b32 v12, 3, v1")
    a("v_lshrrev_b32 v13, 1, v12")
    a("v_and_b32 v14, 7, v1")
    a("v_xor_b32 v13, v13, v14")
    a("v_lshlrev_b32 v13, 4, v13")
    a("s_movk_i32 s53, 1152")
    a("v_mul_lo_u32 v12, v12, s53")
    a("s_mul_i32 s52, s37, %d"%(16*1152))
    a("s_mul_i32 s55, s51, %d"%(XI*8*1152))
    a("s_add_u32 s55, s55, s52")
    if XI%2==0:
        for i in range(XI):
            if i&1: a("v_xor_b32 v14, 64, v13")
            else: a("v_mov_b32 v14, v13")
            a("v_add3_u32 v%d, v12, v14, s55"%VXA[i])
            if i: a("v_add_u32 v%d, %d, v%d"%(VXA[i],i*8*1152-(i%4)*1024,VXA[i]))
    else:
        a("s_and_b32 s56, s51, 1"); a("s_lshl_b32 s56, s56, 6")
        a("v_xor_b32 v15, s56, v13")
        for i in range(XI):
            if i&1: a("v_xor_b32 v14, 64, v15")
            else: a("v_mov_b32 v14, v15")
            a("v_add3_u32 v%d, v12, v14, s55"%VXA[i])
            if i: a("v_add_u32 v%d, %d, v%d"%(VXA[i],i*8*1152-(i%4)*1024,VXA[i]))
    a("s_mul_i32 s56, s51, %d"%(XI*1024))
    def issue_x(c):
        L=[]
        L.append("s_movk_i32 s57, %d"%(c*128))
        for i in range(XI):
            if i%4==0:
                L.append("s_add_u32 m0, s56, %d\n s_nop 0"%((c%3)*XS+i*1024))
            L.append("buffer_load_dwordx4 v%d, s[16:19], s57 offen offset:%d lds"%(VXA[i],(i%4)*1024))
        return L
    for o in issue_x(0): a(o)
    a("s_and_b32 s58, s51, 1"); a("s_lshl_b32 s58, s58, 6")
    a("v_xor_b32 v14, s58, v13")
    a("s_mul_i32 s55, s51, %d"%(8*1152))
    a("s_add_u32 s55, s55, s52")
    a("s_add_u32 s55, s55, %d"%(P*16*1152))
    a("v_add3_u32 v%d, v12, v14, s55"%VP)
    a("s_lshr_b32 s58, s51, 1"); a("s_mul_i32 s58, s58, 18432")
    a("s_and_b32 s59, s51, 1"); a("s_lshl_b32 s59, s59, 10"); a("s_add_u32 s58, s58, s59")
    def issue_pair(j):
        L=[]
        for c in range(9):
            L.append("s_add_u32 m0, s58, %d\n s_movk_i32 s57, %d\n buffer_load_dwordx4 v%d, s[16:19], s57 offen lds"%(pslots[j%4]+c*2048,c*128,VP))
        L.append("v_add_u32 v%d, %d, v%d"%(VP,32*1152,VP))
        return L
    a("v_bfe_u32 v12, v1, 3, 2")
    a("v_lshlrev_b32 v12, 11, v12")
    a("v_and_b32 v13, 7, v1")
    a("v_lshl_add_u32 v12, v13, 4, v12")
    a("v_lshrrev_b32 v13, 5, v1")
    a("v_lshl_add_u32 v12, v13, 8, v12")
    a("s_lshr_b32 s59, s51, 1"); a("s_lshl_b32 s59, s59, 13")
    a("s_and_b32 s55, s51, 1"); a("s_lshl_b32 s55, s55, 9")
    a("s_add_u32 s59, s59, s55"); a("s_add_u32 s59, s59, %d"%WS0)
    a("v_add_u32 v%d, s59, v12"%VW)
    HA,HB=xor_tables([v>>8 for v in T16]); LA,LB=xor_tables([v&255 for v in T16])
    tabs=[dw(HA[:4]),dw(HA[4:]),dw(HB[:4]),dw(HB[4:]),dw(LA[:4]),dw(LA[4:]),dw(LB[:4]),dw(LB[4:])]
    for i,t in enumerate(tabs): a("v_mov_b32 v%d, 0x%08x"%(TB+i,t))
    a("s_mov_b32 s28, 0x05010400"); a("s_mov_b32 s29, 0x07030602")
    def dequant(st,wslot,inter):
        ops=[]
        Q=QS[st]
        for e in range(4):
            O=TMP+16+4*e
            for hf in range(2):
                r=[Q+4*(4*hf+j)+e for j in range(4)]
                t0,t1,s1,s2=TMP,TMP+1,TMP+2+hf,TMP+4+hf
                x=TMP+6+4*hf
                ops.append("v_lshl_or_b32 v%d, v%d, 8, v%d"%(t0,r[1],r[0]))
                ops.append("v_lshl_or_b32 v%d, v%d, 8, v%d"%(t1,r[3],r[2]))
                ops.append("v_lshl_or_b32 v%d, v%d, 16, v%d"%(s1,t1,t0))
                ops.append("v_xor_b32 v%d, 0x08080808, v%d"%(s2,s1))
                ops.append("v_perm_b32 v%d, v%d, v%d, v%d"%(x,TB+1,TB+0,s1))
                ops.append("v_perm_b32 v%d, v%d, v%d, v%d"%(x+1,TB+3,TB+2,s2))
                ops.append("v_perm_b32 v%d, v%d, v%d, v%d"%(x+2,TB+5,TB+4,s1))
                ops.append("v_perm_b32 v%d, v%d, v%d, v%d"%(x+3,TB+7,TB+6,s2))
                ops.append("v_xor_b32 v%d, v%d, v%d"%(x,x,x+1))
                ops.append("v_xor_b32 v%d, v%d, v%d"%(x+2,x+2,x+3))
                ops.append("v_perm_b32 v%d, v%d, v%d, s28"%(O+2*hf,x,x+2))
                ops.append("v_perm_b32 v%d, v%d, v%d, s29"%(O+2*hf+1,x,x+2))
            ops.append("ds_write_b128 v%d, v[%d:%d] offset:%d"%(VW,O,O+3,wslot*16384+(e&1)*1024+(e>>1)*128))
        n=len(ops); k=0
        for i,o in enumerate(ops):
            a(o)
            tgt=len(inter)*(i+1)//n
            while k<tgt: a(inter[k]); k+=1
    for c in range(-1,9):
        if c+2<=8:
            for o in issue_q(c%2): a(o)
            first=8; inter=issue_x(c+2); second=XI
        else:
            first=0; inter=issue_pair(c+2-9); second=9
        if c+1<=8:
            a("s_waitcnt vmcnt(%d)"%(XI+first))
            if c in (-1,0,3,7): stamp()
            dequant((c+1)%2,(c+1)%2,inter)
            a("s_waitcnt vmcnt(%d) lgkmcnt(0)"%(first+second))
        else:
            for o in inter: a(o)
            a("s_waitcnt vmcnt(9)")
        a("s_barrier")
        if c in (-1,0,3,7,8): stamp()
    for j in range(1,NPAIR):
        if j+1<NPAIR:
            for o in issue_pair(j+1): a(o)
            a("s_waitcnt vmcnt(9)")
            a("s_barrier")
        else:
            a("s_cmp_ge_u32 s36, 2")
            a("s_cbranch_scc1 L_p_end18")
            a("s_cmp_ge_u32 s51, 2")
            a("s_cbranch_scc1 L_p_nosingle")
            for o in issue_pair(j+1): a(o)
            a("s_waitcnt vmcnt(9)")
            a("s_barrier")
            a("s_waitcnt vmcnt(0)")
            a("s_barrier")
            a("s_branch L_p_done")
            a.lab("L_p_nosingle")
            a("s_waitcnt vmcnt(0)")
            a("s_barrier")
            a("s_barrier")
            a("s_branch L_p_done")
            a.lab("L_p_end18")
            a("s_waitcnt vmcnt(0)")
            a("s_barrier")
            a.lab("L_p_done")
    stamp()
    stamp_out("p")
    a.lab("L_end")
    body=a.txt()
    hdr=open("standalone__normalfloat_lut_nf4__prompt.s.ref").read().split("; Override launch")[0]
    s=hdr+f"""; @launch grid=(252,1,1) block=(512,1,1) lds={LDS}
.amdgcn_target "amdgcn-amd-amdhsa--gfx950"
.text
.globl {KN}
.p2align 8
.type {KN},@function
{KN}:
{body}s_endpgm
.section .rodata,"a"
.p2align 6
.amdhsa_kernel {KN}
  .amdhsa_next_free_vgpr 256
  .amdhsa_next_free_sgpr 102
  .amdhsa_accum_offset 256
  .amdhsa_group_segment_fixed_size 0
  .amdhsa_kernarg_size 48
  .amdhsa_user_sgpr_count 2
  .amdhsa_user_sgpr_kernarg_segment_ptr 1
  .amdhsa_system_sgpr_workgroup_id_x 1
.end_amdhsa_kernel
"""
    return s,LDS
if __name__=="__main__":
    import build
    s,l=gen()
    open("k1.s","w").write(s); build.build("k1.s","k1.co")
    s,l=gen(stamps=True)
    open("k1s.s","w").write(s); build.build("k1s.s","k1s.co")
    print("LDS",l)
```

```python
import sys, struct
KN="standalone__normalfloat_lut_nf4__prompt_kernel"
M,N,K=2048,4608,576
NF4=[-1.0,-0.6961928009986877,-0.5250730514526367,-0.39491748809814453,-0.28444138169288635,-0.18477343022823334,-0.09105003625154495,0.0,
     0.07958029955625534,0.16093020141124725,0.24611230194568634,0.33791524171829224,0.44070982933044434,0.5626170039176941,0.7229568362236023,1.0]
def f2bf(f):
    u=struct.unpack('<I',struct.pack('<f',f))[0]
    return ((u+0x7fff+((u>>16)&1))>>16)&0xffff
T16=[f2bf(v) for v in NF4]
def perm_byte(tab8,sel):
    if sel>=13: return 0xff
    if sel==12: return 0
    if sel>=8: return 0xff if tab8[2*(sel-8)+1]&0x80 else 0
    return tab8[sel]
def xor_tables(T):
    A=[0]*8;B=[0]*8
    for _ in range(8):
        for q in range(8):
            A[q]=T[q]^perm_byte(B,q+8)
            B[q]=T[q+8]^perm_byte(A,q+8)
    for q in range(16):
        assert perm_byte(A,q)^perm_byte(B,q^8)==T[q]
    return A,B
def dw(b): return b[0]|b[1]<<8|b[2]<<16|b[3]<<24

class Asm:
    def __init__(s): s.l=[]
    def __call__(s,x): s.l.append(" "+x)
    def lab(s,x): s.l.append(x+":")
    def txt(s): return "\n".join(s.l)+"\n"

def gen(P=8, stflags="sc0 sc1", stamps=False, sched=None, NXB=6):
    assert P%2==0
    a=Asm()
    XI=P//2
    XS=P*2048
    WS0=3*XS
    PA=WS0+2*16384
    PB=PA+36864
    LDS=PB+36864
    assert LDS<=163840
    pslots=[PA,PB,0,36864]
    assert 73728<=PA
    NT2=19-P
    NPAIR=(18-P)//2
    if stamps: a("s_memrealtime s[90:91]"); a("s_memtime s[88:89]")
    a("s_load_dwordx4 s[4:7], s[0:1], 0")
    a("s_load_dwordx4 s[8:11], s[0:1], 16")
    if stamps: a("s_load_dwordx2 s[14:15], s[0:1], %d"%(40 if stamps==1 else 32))
    a("s_cmp_ge_u32 s2, 252")
    a("s_cbranch_scc1 L_end")
    a("v_lshrrev_b32 v2, 6, v0")
    a("v_and_b32 v1, 63, v0")
    a("s_and_b32 s30, s2, 7")
    a("v_readfirstlane_b32 s50, v2")
    a("s_lshr_b32 s31, s2, 3")
    a("s_lshl_b32 s34, s30, 5")
    a("s_sub_u32 s35, s30, 4")
    a("s_max_i32 s35, s35, 0")
    a("s_sub_u32 s34, s34, s35")
    a("s_add_u32 s34, s34, s31")
    a("s_mul_i32 s35, s34, 9363")
    a("s_lshr_b32 s35, s35, 16")
    a("s_mul_i32 s36, s35, 7")
    a("s_sub_u32 s36, s34, s36")
    a("s_mul_i32 s37, s36, 18")
    a("s_min_u32 s38, s36, 2")
    a("s_add_u32 s37, s37, s38")
    a("s_mov_b32 s18, %d"%(M*K*2)); a("s_mov_b32 s19, 0x20000")
    a("s_mov_b32 s22, %d"%(K*N*4)); a("s_mov_b32 s23, 0x20000")
    a("s_mov_b32 s26, %d"%(M*N*2)); a("s_mov_b32 s27, 0x20000")
    a("s_mov_b32 s42, %d"%(N*2)); a("s_mov_b32 s43, 0x20000")
    a("s_cmp_ge_u32 s50, 4")
    a("s_cbranch_scc1 L_prod")
    nst=[0]
    def stamp():
        if stamps:
            assert nst[0]<14
            a("s_memtime s[%d:%d]"%(60+2*nst[0],61+2*nst[0])); nst[0]+=1
    def stamp_out(tag):
        if not stamps: return
        a("s_memrealtime s[92:93]")
        a("s_waitcnt vmcnt(0) lgkmcnt(0)")
        a("s_mov_b32 s44, s14"); a("s_mov_b32 s45, s15"); a("s_mov_b32 s46, 0x10000000"); a("s_mov_b32 s47, 0x20000")
        for i in range(14):
            if i<nst[0]: a("s_sub_u32 s%d, s%d, s88"%(60+2*i,60+2*i)); a("v_mov_b32 v%d, s%d"%(16+i,60+2*i))
            else: a("v_mov_b32 v%d, 0"%(16+i))
        a("v_mov_b32 v30, s90"); a("v_mov_b32 v31, s92")
        if stamps==2:
            a("s_mov_b32 s46, 256")
            a("v_not_b32 v30, v30")
            a("v_mov_b32 v12, 0")
            a("v_cmp_eq_u32 vcc, 0, v1")
            a("s_and_saveexec_b64 s[48:49], vcc")
            a("buffer_atomic_umax v30, v12, s[44:47], 0 offen")
            a("buffer_atomic_umax v31, v12, s[44:47], 0 offen offset:4")
            a("buffer_atomic_umax v%d, v12, s[44:47], 0 offen offset:8"%(16+nst[0]-1))
            if tag=="c":
                a("s_lshl_b32 s48, s2, 3"); a("s_add_u32 s48, s48, s50")
                a("s_cmp_lg_u32 s48, %d"%(17*8))
                a("s_cbranch_scc1 L_end")
                a("v_sub_u32 v15, v31, v30")
                a("s_sub_u32 s48, s92, s90")
                a("v_mov_b32 v15, s48")
                a("buffer_store_dword v15, v12, s[44:47], 0 offen offset:12")
                for i in range(3): a("buffer_store_dwordx4 v[%d:%d], v12, s[44:47], 0 offen offset:%d"%(16+4*i,19+4*i,16+16*i))
            return
        a("s_lshl_b32 s48, s2, 3"); a("s_add_u32 s48, s48, s50"); a("s_lshl_b32 s48, s48, 6")
        a("v_mov_b32 v12, s48")
        a("v_cmp_eq_u32 vcc, 0, v1")
        a("s_and_saveexec_b64 s[48:49], vcc")
        for i in range(4): a("buffer_store_dwordx4 v[%d:%d], v12, s[44:47], 0 offen offset:%d"%(16+4*i,19+4*i,16*i))
    XA0,XA1,WA,SC0,SC1=2,3,4,5,6
    OA=[8,9,10,11]
    XB0=16
    ACC0=XB0+4*NXB
    W0=112
    assert ACC0+(P+1)*8<=W0
    def wreg(s,t): r=W0+(2*s+t)*4; return "v[%d:%d]"%(r,r+3)
    def xb(i): r=XB0+4*(i%NXB); return "v[%d:%d]"%(r,r+3)
    def acc(slot,t): r=ACC0+slot*8+4*t; return "v[%d:%d]"%(r,r+3)
    a("v_and_b32 v12, 15, v1")
    a("v_lshrrev_b32 v13, 4, v1")
    a("s_lshl_b32 s39, s35, 8")
    a("s_lshl_b32 s51, s50, 6")
    a("s_add_u32 s39, s39, s51")
    a("v_lshlrev_b32 v14, 2, v12")
    a("v_add_u32 v14, s39, v14")
    a("s_waitcnt lgkmcnt(0)")
    a("s_mov_b32 s40, s8"); a("s_mov_b32 s41, s9")
    a("s_mov_b32 s24, s10"); a("s_mov_b32 s25, s11")
    a("buffer_load_dword v7, v14, s[40:43], 0 offen")
    a("v_lshrrev_b32 v15, 1, v12")
    a("v_xor_b32 v15, v15, v13")
    a("v_lshlrev_b32 v15, 4, v15")
    a("v_lshl_add_u32 v%d, v12, 7, v15"%XA0)
    a("v_xor_b32 v%d, 64, v%d"%(XA1,XA0))
    a("v_and_b32 v15, 1, v12")
    a("v_lshlrev_b32 v15, 3, v15")
    a("v_lshl_add_u32 v15, v13, 4, v15")
    a("v_lshrrev_b32 v%d, 1, v12"%WA)
    a("v_add_u32 v15, v15, v%d"%WA)
    a("s_lshl_b32 s51, s50, 11")
    a("s_add_u32 s51, s51, %d"%WS0)
    a("v_lshlrev_b32 v15, 4, v15")
    a("v_add_u32 v%d, s51, v15"%WA)
    a("s_mul_i32 s52, s37, %d"%(16*9216))
    a("s_mov_b32 s53, %d"%(4*9216))
    a("v_mul_lo_u32 v15, v13, s53")
    a("v_add3_u32 v%d, v15, v14, s52"%OA[0])
    for r in range(1,4): a("v_add_u32 v%d, %d, v%d"%(OA[r],9216*r,OA[0]))
    a("s_waitcnt vmcnt(0)")
    a("v_lshlrev_b32 v%d, 16, v7"%SC0)
    a("v_and_b32 v%d, 0xffff0000, v7"%SC1)
    for c in range(9):
        a("s_barrier")
        if c in (0,1,4,8): stamp()
        xs=(c%3)*XS; ws=(c%2)*16384
        items=[(s,t) for s in range(2) for t in range(P)]
        q=[]
        def rdw(s,t):
            a("ds_read_b128 %s, v%d offset:%d"%(wreg(2*c+s,t),WA,ws+(s*8+t)*1024)); q.append(("w",s,t))
        def rdx(n):
            s,t=items[n]
            a("ds_read_b128 %s, v%d offset:%d"%(xb(n),XA1 if s else XA0,xs+t*2048)); q.append(("x",n))
        rdw(0,0); rdx(0); rdw(0,1)
        for n in range(1,NXB): rdx(n)
        rdw(1,0); rdw(1,1)
        for n,(s,t) in enumerate(items):
            need=[("x",n),("w",s,0),("w",s,1)]
            last=max(q.index(x) for x in need if x in q) if any(x in q for x in need) else -1
            if last>=0:
                a("s_waitcnt lgkmcnt(%d)"%(len(q)-1-last)); del q[:last+1]
            for tt in range(2):
                src="0" if (c==0 and s==0) else acc(t,tt)
                a("v_mfma_f32_16x16x32_bf16 %s, %s, %s, %s"%(acc(t,tt),xb(n),wreg(2*c+s,tt),src))
            if n+NXB<len(items): rdx(n+NXB)
        assert not q
    def epi_ops(slot,tile):
        ops=[]
        b=ACC0+slot*8
        for r in range(4):
            ops.append("v_mul_f32 v%d, v%d, v%d"%(b+r,b+r,SC0))
            ops.append("v_mul_f32 v%d, v%d, v%d"%(b+4+r,b+4+r,SC1))
        for r in range(4):
            ops.append("v_cvt_pk_bf16_f32 v%d, v%d, v%d"%(b+r,b+r,b+4+r))
        ops.append("s_mov_b32 s54, %d"%(tile*16*9216))
        for r in range(4):
            ops.append("buffer_store_dword v%d, v%d, s[24:27], s54 offen %s"%(b+r,OA[r],stflags))
        return ops
    if sched is None:
        tot=18; sched=[]; done=0
        for u in range(NT2):
            want=-(-tot*(u+1)//NT2)
            want=min(want,P+u)
            sched.append(want-done); done=want
    pend=[(t,t) for t in range(P)]
    free=[P]
    curbase=0
    def tile_body(u,slot,lbase,fill):
        q=[]
        def rdx(n):
            a("ds_read_b128 %s, v%d offset:%d"%(xb(n),XA1 if n&1 else XA0,lbase+(n>>1)*2048)); q.append(n)
        for n in range(NXB): rdx(n)
        fi=0
        for n in range(18):
            last=q.index(n)
            a("s_waitcnt lgkmcnt(%d)"%(len(q)-1-last)); del q[:last+1]
            for tt in range(2):
                src="0" if n==0 else acc(slot,tt)
                a("v_mfma_f32_16x16x32_bf16 %s, %s, %s, %s"%(acc(slot,tt),xb(n),wreg(n,tt),src))
                if tt==0 and n>=2:
                    tgt=-(-len(fill)*(n-1)//16)
                    if fi<tgt: a(fill[fi]); fi+=1
            if n+NXB<18: rdx(n+NXB)
            if n>=2:
                tgt=-(-len(fill)*(n-1)//16)
                while fi<tgt: a(fill[fi]); fi+=1
        assert fi==len(fill)
    for u in range(NT2):
        pj=u//2
        if u==NT2-1:
            a("s_cmp_ge_u32 s36, 2")
            a("s_cbranch_scc1 L_c_end18")
            pend18=list(pend)
        if u%2==0:
            nb_=pslots[pj%4]
            d=nb_-curbase
            if d>0:
                a("v_add_u32 v%d, %d, v%d"%(XA0,d,XA0)); a("v_add_u32 v%d, %d, v%d"%(XA1,d,XA1))
            elif d<0:
                a("v_subrev_u32 v%d, %d, v%d"%(XA0,-d,XA0)); a("v_subrev_u32 v%d, %d, v%d"%(XA1,-d,XA1))
            curbase=nb_
            a("s_barrier")
            stamp()
        slot=free.pop(0)
        fill=[]
        for _ in range(sched[u]):
            sl,tl=pend.pop(0); fill+=epi_ops(sl,tl); free.append(sl)
        tile_body(u,slot,(u%2)*18432,fill)
        pend.append((slot,P+u))
    a("s_nop 7")
    for sl,tl in pend:
        for o in epi_ops(sl,tl): a(o)
    sv=nst[0]
    stamp()
    a("s_branch L_c_done")
    a.lab("L_c_end18")
    a("s_nop 7")
    for sl,tl in pend18:
        for o in epi_ops(sl,tl): a(o)
    if stamps:
        nst[0]=sv-1; stamp(); stamp()
    a.lab("L_c_done")
    if stamps:
        a("s_waitcnt vmcnt(0)"); stamp(); stamp_out("c")
    a("s_endpgm")
    a.lab("L_prod")
    nst[0]=0
    VQ=2; VXA=[3,4,5,6,7][:XI] if XI<=5 else None; VP=8; VW=9
    TB=16
    QS=[32,64]
    TMP=96
    a("s_sub_u32 s51, s50, 4")
    a("v_lshrrev_b32 v12, 5, v1")
    a("s_mov_b32 s53, %d"%(8*18432))
    a("v_mul_lo_u32 v12, v12, s53")
    a("v_and_b32 v13, 31, v1")
    a("v_lshl_add_u32 v12, v13, 4, v12")
    a("s_lshl_b32 s39, s35, 9")
    a("s_mul_i32 s52, s51, %d"%(16*18432))
    a("s_add_u32 s39, s39, s52")
    a("v_add_u32 v%d, s39, v12"%VQ)
    for j in range(1,8): a("s_mov_b32 s%d, %d"%(94+j-1 if False else 54+j,j*18432)) if False else None
    SJ=[None]+[94+j for j in range(7)]
    for j in range(1,8): a("s_mov_b32 s%d, %d"%(SJ[j],j*18432))
    a("s_waitcnt lgkmcnt(0)")
    a("s_mov_b32 s20, s6"); a("s_mov_b32 s21, s7")
    a("s_mov_b32 s16, s4"); a("s_mov_b32 s17, s5")
    def issue_q(st):
        L=[]
        for j in range(8):
            r=QS[st]+4*j
            L.append("buffer_load_dwordx4 v[%d:%d], v%d, s[20:23], %s offen"%(r,r+3,VQ,"0" if j==0 else "s%d"%SJ[j]))
        L.append("v_add_u32 v%d, %d, v%d"%(VQ,64*18432,VQ))
        return L
    for o in issue_q(0): a(o)
    a("v_lshrrev_b32 v12, 3, v1")
    a("v_lshrrev_b32 v13, 1, v12")
    a("v_and_b32 v14, 7, v1")
    a("v_xor_b32 v13, v13, v14")
    a("v_lshlrev_b32 v13, 4, v13")
    a("s_movk_i32 s53, 1152")
    a("v_mul_lo_u32 v12, v12, s53")
    a("s_mul_i32 s52, s37, %d"%(16*1152))
    a("s_mul_i32 s55, s51, %d"%(XI*8*1152))
    a("s_add_u32 s55, s55, s52")
    if XI%2==0:
        for i in range(XI):
            if i&1: a("v_xor_b32 v14, 64, v13")
            else: a("v_mov_b32 v14, v13")
            a("v_add3_u32 v%d, v12, v14, s55"%VXA[i])
            if i: a("v_add_u32 v%d, %d, v%d"%(VXA[i],i*8*1152-(i%4)*1024,VXA[i]))
    else:
        a("s_and_b32 s56, s51, 1"); a("s_lshl_b32 s56, s56, 6")
        a("v_xor_b32 v15, s56, v13")
        for i in range(XI):
            if i&1: a("v_xor_b32 v14, 64, v15")
            else: a("v_mov_b32 v14, v15")
            a("v_add3_u32 v%d, v12, v14, s55"%VXA[i])
            if i: a("v_add_u32 v%d, %d, v%d"%(VXA[i],i*8*1152-(i%4)*1024,VXA[i]))
    a("s_mul_i32 s56, s51, %d"%(XI*1024))
    def issue_x(c):
        L=[]
        L.append("s_movk_i32 s57, %d"%(c*128))
        for i in range(XI):
            if i%4==0:
                L.append("s_add_u32 m0, s56, %d\n s_nop 0"%((c%3)*XS+i*1024))
            L.append("buffer_load_dwordx4 v%d, s[16:19], s57 offen offset:%d lds"%(VXA[i],(i%4)*1024))
        return L
    for o in issue_x(0): a(o)
    a("s_and_b32 s58, s51, 1"); a("s_lshl_b32 s58, s58, 6")
    a("v_xor_b32 v14, s58, v13")
    a("s_mul_i32 s55, s51, %d"%(8*1152))
    a("s_add_u32 s55, s55, s52")
    a("s_add_u32 s55, s55, %d"%(P*16*1152))
    a("v_add3_u32 v%d, v12, v14, s55"%VP)
    a("s_lshr_b32 s58, s51, 1"); a("s_mul_i32 s58, s58, 18432")
    a("s_and_b32 s59, s51, 1"); a("s_lshl_b32 s59, s59, 10"); a("s_add_u32 s58, s58, s59")
    def issue_pair(j):
        L=[]
        for c in range(9):
            L.append("s_add_u32 m0, s58, %d\n s_movk_i32 s57, %d\n buffer_load_dwordx4 v%d, s[16:19], s57 offen lds"%(pslots[j%4]+c*2048,c*128,VP))
        L.append("v_add_u32 v%d, %d, v%d"%(VP,32*1152,VP))
        return L
    a("v_bfe_u32 v12, v1, 3, 2")
    a("v_lshlrev_b32 v12, 11, v12")
    a("v_and_b32 v13, 7, v1")
    a("v_lshl_add_u32 v12, v13, 4, v12")
    a("v_lshrrev_b32 v13, 5, v1")
    a("v_lshl_add_u32 v12, v13, 8, v12")
    a("s_lshr_b32 s59, s51, 1"); a("s_lshl_b32 s59, s59, 13")
    a("s_and_b32 s55, s51, 1"); a("s_lshl_b32 s55, s55, 9")
    a("s_add_u32 s59, s59, s55"); a("s_add_u32 s59, s59, %d"%WS0)
    a("v_add_u32 v%d, s59, v12"%VW)
    HA,HB=xor_tables([v>>8 for v in T16]); LA,LB=xor_tables([v&255 for v in T16])
    tabs=[dw(HA[:4]),dw(HA[4:]),dw(HB[:4]),dw(HB[4:]),dw(LA[:4]),dw(LA[4:]),dw(LB[:4]),dw(LB[4:])]
    for i,t in enumerate(tabs): a("v_mov_b32 v%d, 0x%08x"%(TB+i,t))
    a("s_mov_b32 s28, 0x05010400"); a("s_mov_b32 s29, 0x07030602")
    def dequant(st,wslot,inter):
        ops=[]
        Q=QS[st]
        for e in range(4):
            O=TMP+16+4*e
            for hf in range(2):
                r=[Q+4*(4*hf+j)+e for j in range(4)]
                t0,t1,s1,s2=TMP,TMP+1,TMP+2+hf,TMP+4+hf
                x=TMP+6+4*hf
                ops.append("v_lshl_or_b32 v%d, v%d, 8, v%d"%(t0,r[1],r[0]))
                ops.append("v_lshl_or_b32 v%d, v%d, 8, v%d"%(t1,r[3],r[2]))
                ops.append("v_lshl_or_b32 v%d, v%d, 16, v%d"%(s1,t1,t0))
                ops.append("v_xor_b32 v%d, 0x08080808, v%d"%(s2,s1))
                ops.append("v_perm_b32 v%d, v%d, v%d, v%d"%(x,TB+1,TB+0,s1))
                ops.append("v_perm_b32 v%d, v%d, v%d, v%d"%(x+1,TB+3,TB+2,s2))
                ops.append("v_perm_b32 v%d, v%d, v%d, v%d"%(x+2,TB+5,TB+4,s1))
                ops.append("v_perm_b32 v%d, v%d, v%d, v%d"%(x+3,TB+7,TB+6,s2))
                ops.append("v_xor_b32 v%d, v%d, v%d"%(x,x,x+1))
                ops.append("v_xor_b32 v%d, v%d, v%d"%(x+2,x+2,x+3))
                ops.append("v_perm_b32 v%d, v%d, v%d, s28"%(O+2*hf,x,x+2))
                ops.append("v_perm_b32 v%d, v%d, v%d, s29"%(O+2*hf+1,x,x+2))
            ops.append("ds_write_b128 v%d, v[%d:%d] offset:%d"%(VW,O,O+3,wslot*16384+(e&1)*1024+(e>>1)*128))
        n=len(ops); k=0
        for i,o in enumerate(ops):
            a(o)
            tgt=len(inter)*(i+1)//n
            while k<tgt: a(inter[k]); k+=1
    for c in range(-1,9):
        if c+2<=8:
            for o in issue_q(c%2): a(o)
            first=8; inter=issue_x(c+2); second=XI
        else:
            first=0; inter=issue_pair(c+2-9); second=9
        if c+1<=8:
            a("s_waitcnt vmcnt(%d)"%(XI+first))
            if c in (-1,0,3,7): stamp()
            dequant((c+1)%2,(c+1)%2,inter)
            a("s_waitcnt vmcnt(%d) lgkmcnt(0)"%(first+second))
        else:
            for o in inter: a(o)
            a("s_waitcnt vmcnt(9)")
        a("s_barrier")
        if c in (-1,0,3,7,8): stamp()
    for j in range(1,NPAIR):
        if j+1<NPAIR:
            for o in issue_pair(j+1): a(o)
            a("s_waitcnt vmcnt(9)")
            a("s_barrier")
        else:
            a("s_cmp_ge_u32 s36, 2")
            a("s_cbranch_scc1 L_p_end18")
            a("s_cmp_ge_u32 s51, 2")
            a("s_cbranch_scc1 L_p_nosingle")
            for o in issue_pair(j+1): a(o)
            a("s_waitcnt vmcnt(9)")
            a("s_barrier")
            a("s_waitcnt vmcnt(0)")
            a("s_barrier")
            a("s_branch L_p_done")
            a.lab("L_p_nosingle")
            a("s_waitcnt vmcnt(0)")
            a("s_barrier")
            a("s_barrier")
            a("s_branch L_p_done")
            a.lab("L_p_end18")
            a("s_waitcnt vmcnt(0)")
            a("s_barrier")
            a.lab("L_p_done")
    stamp()
    stamp_out("p")
    a.lab("L_end")
    body=a.txt()
    hdr=open("standalone__normalfloat_lut_nf4__prompt.s.ref").read().split("; Override launch")[0]
    s=hdr+f"""; @launch grid=(252,1,1) block=(512,1,1) lds={LDS}
.amdgcn_target "amdgcn-amd-amdhsa--gfx950"
.text
.globl {KN}
.p2align 8
.type {KN},@function
{KN}:
{body}s_endpgm
.section .rodata,"a"
.p2align 6
.amdhsa_kernel {KN}
  .amdhsa_next_free_vgpr 256
  .amdhsa_next_free_sgpr 102
  .amdhsa_accum_offset 256
  .amdhsa_group_segment_fixed_size 0
  .amdhsa_kernarg_size 48
  .amdhsa_user_sgpr_count 2
  .amdhsa_user_sgpr_kernarg_segment_ptr 1
  .amdhsa_system_sgpr_workgroup_id_x 1
.end_amdhsa_kernel
"""
    return s,LDS
if __name__=="__main__":
    import build
    s,l=gen()
    open("k1.s","w").write(s); build.build("k1.s","k1.co")
    s,l=gen(stamps=True)
    open("k1s.s","w").write(s); build.build("k1s.s","k1s.co")
    s,l=gen(stamps=2)
    open("k1d.s","w").write(s); build.build("k1d.s","k1d.co")
    print("LDS",l)
```

```python
import sys, struct
KN="standalone__normalfloat_lut_nf4__prompt_kernel"
M,N,K=2048,4608,576
NF4=[-1.0,-0.6961928009986877,-0.5250730514526367,-0.39491748809814453,-0.28444138169288635,-0.18477343022823334,-0.09105003625154495,0.0,
     0.07958029955625534,0.16093020141124725,0.24611230194568634,0.33791524171829224,0.44070982933044434,0.5626170039176941,0.7229568362236023,1.0]
def f2bf(f):
    u=struct.unpack('<I',struct.pack('<f',f))[0]
    return ((u+0x7fff+((u>>16)&1))>>16)&0xffff
T16=[f2bf(v) for v in NF4]
def perm_byte(tab8,sel):
    if sel>=13: return 0xff
    if sel==12: return 0
    if sel>=8: return 0xff if tab8[2*(sel-8)+1]&0x80 else 0
    return tab8[sel]
def xor_tables(T):
    A=[0]*8;B=[0]*8
    for _ in range(8):
        for q in range(8):
            A[q]=T[q]^perm_byte(B,q+8)
            B[q]=T[q+8]^perm_byte(A,q+8)
    for q in range(16):
        assert perm_byte(A,q)^perm_byte(B,q^8)==T[q]
    return A,B
def dw(b): return b[0]|b[1]<<8|b[2]<<16|b[3]<<24

class Asm:
    def __init__(s): s.l=[]
    def __call__(s,x): s.l.append(" "+x)
    def lab(s,x): s.l.append(x+":")
    def txt(s): return "\n".join(s.l)+"\n"

def gen(P=8, stflags="sc0 sc1", stamps=False, sched=None, NXB=6):
    assert P%2==0
    a=Asm()
    XI=P//2
    XS=P*2048
    WS0=3*XS
    PA=WS0+2*16384
    PB=PA+36864
    LDS=PB+36864
    assert LDS<=163840
    pslots=[PA,PB,0,36864]
    assert 73728<=PA
    NT2=19-P
    NPAIR=(18-P)//2
    if stamps: a("s_memrealtime s[90:91]"); a("s_memtime s[88:89]")
    a("s_load_dwordx4 s[4:7], s[0:1], 0")
    a("s_load_dwordx4 s[8:11], s[0:1], 16")
    if stamps: a("s_load_dwordx2 s[14:15], s[0:1], %d"%(40 if stamps==1 else 32))
    a("s_cmp_ge_u32 s2, 252")
    a("s_cbranch_scc1 L_end")
    a("v_lshrrev_b32 v2, 6, v0")
    a("v_and_b32 v1, 63, v0")
    a("s_and_b32 s30, s2, 7")
    a("v_readfirstlane_b32 s50, v2")
    a("s_lshr_b32 s31, s2, 3")
    a("s_lshl_b32 s34, s30, 5")
    a("s_sub_u32 s35, s30, 4")
    a("s_max_i32 s35, s35, 0")
    a("s_sub_u32 s34, s34, s35")
    a("s_add_u32 s34, s34, s31")
    a("s_mul_i32 s35, s34, 9363")
    a("s_lshr_b32 s35, s35, 16")
    a("s_mul_i32 s36, s35, 7")
    a("s_sub_u32 s36, s34, s36")
    a("s_mul_i32 s37, s36, 18")
    a("s_min_u32 s38, s36, 2")
    a("s_add_u32 s37, s37, s38")
    a("s_mov_b32 s18, %d"%(M*K*2)); a("s_mov_b32 s19, 0x20000")
    a("s_mov_b32 s22, %d"%(K*N*4)); a("s_mov_b32 s23, 0x20000")
    a("s_mov_b32 s26, %d"%(M*N*2)); a("s_mov_b32 s27, 0x20000")
    a("s_mov_b32 s42, %d"%(N*2)); a("s_mov_b32 s43, 0x20000")
    a("s_cmp_ge_u32 s50, 4")
    a("s_cbranch_scc1 L_prod")
    nst=[0]
    def stamp():
        if stamps:
            assert nst[0]<14
            a("s_memtime s[%d:%d]"%(60+2*nst[0],61+2*nst[0])); nst[0]+=1
    def stamp_out(tag):
        if not stamps: return
        a("s_memrealtime s[92:93]")
        a("s_waitcnt vmcnt(0) lgkmcnt(0)")
        a("s_mov_b32 s44, s14"); a("s_mov_b32 s45, s15"); a("s_mov_b32 s46, 0x10000000"); a("s_mov_b32 s47, 0x20000")
        for i in range(14):
            if i<nst[0]: a("s_sub_u32 s%d, s%d, s88"%(60+2*i,60+2*i)); a("v_mov_b32 v%d, s%d"%(16+i,60+2*i))
            else: a("v_mov_b32 v%d, 0"%(16+i))
        a("v_mov_b32 v30, s90"); a("v_mov_b32 v31, s92")
        if stamps==2:
            if tag=="c":
                a("s_mov_b32 s46, 256")
                a("s_cmp_lg_u32 s50, 0")
                a("s_cbranch_scc1 L_end")
                a("s_lshr_b32 s48, s2, 5")
                a("s_mul_i32 s49, s48, 33")
                a("s_cmp_lg_u32 s49, s2")
                a("s_cbranch_scc1 L_end")
                a("s_lshl_b32 s48, s48, 3")
                a("v_mov_b32 v12, s48")
                a("v_cmp_eq_u32 vcc, 0, v1")
                a("s_and_saveexec_b64 s[48:49], vcc")
                a("buffer_store_dwordx2 v[30:31], v12, s[44:47], 0 offen")
            return
        a("s_lshl_b32 s48, s2, 3"); a("s_add_u32 s48, s48, s50"); a("s_lshl_b32 s48, s48, 6")
        a("v_mov_b32 v12, s48")
        a("v_cmp_eq_u32 vcc, 0, v1")
        a("s_and_saveexec_b64 s[48:49], vcc")
        for i in range(4): a("buffer_store_dwordx4 v[%d:%d], v12, s[44:47], 0 offen offset:%d"%(16+4*i,19+4*i,16*i))
    XA0,XA1,WA,SC0,SC1=2,3,4,5,6
    OA=[8,9,10,11]
    XB0=16
    ACC0=XB0+4*NXB
    W0=112
    assert ACC0+(P+1)*8<=W0
    def wreg(s,t): r=W0+(2*s+t)*4; return "v[%d:%d]"%(r,r+3)
    def xb(i): r=XB0+4*(i%NXB); return "v[%d:%d]"%(r,r+3)
    def acc(slot,t): r=ACC0+slot*8+4*t; return "v[%d:%d]"%(r,r+3)
    a("v_and_b32 v12, 15, v1")
    a("v_lshrrev_b32 v13, 4, v1")
    a("s_lshl_b32 s39, s35, 8")
    a("s_lshl_b32 s51, s50, 6")
    a("s_add_u32 s39, s39, s51")
    a("v_lshlrev_b32 v14, 2, v12")
    a("v_add_u32 v14, s39, v14")
    a("s_waitcnt lgkmcnt(0)")
    a("s_mov_b32 s40, s8"); a("s_mov_b32 s41, s9")
    a("s_mov_b32 s24, s10"); a("s_mov_b32 s25, s11")
    a("buffer_load_dword v7, v14, s[40:43], 0 offen")
    a("v_lshrrev_b32 v15, 1, v12")
    a("v_xor_b32 v15, v15, v13")
    a("v_lshlrev_b32 v15, 4, v15")
    a("v_lshl_add_u32 v%d, v12, 7, v15"%XA0)
    a("v_xor_b32 v%d, 64, v%d"%(XA1,XA0))
    a("v_and_b32 v15, 1, v12")
    a("v_lshlrev_b32 v15, 3, v15")
    a("v_lshl_add_u32 v15, v13, 4, v15")
    a("v_lshrrev_b32 v%d, 1, v12"%WA)
    a("v_add_u32 v15, v15, v%d"%WA)
    a("s_lshl_b32 s51, s50, 11")
    a("s_add_u32 s51, s51, %d"%WS0)
    a("v_lshlrev_b32 v15, 4, v15")
    a("v_add_u32 v%d, s51, v15"%WA)
    a("s_mul_i32 s52, s37, %d"%(16*9216))
    a("s_mov_b32 s53, %d"%(4*9216))
    a("v_mul_lo_u32 v15, v13, s53")
    a("v_add3_u32 v%d, v15, v14, s52"%OA[0])
    for r in range(1,4): a("v_add_u32 v%d, %d, v%d"%(OA[r],9216*r,OA[0]))
    a("s_waitcnt vmcnt(0)")
    a("v_lshlrev_b32 v%d, 16, v7"%SC0)
    a("v_and_b32 v%d, 0xffff0000, v7"%SC1)
    for c in range(9):
        a("s_barrier")
        if c in (0,1,4,8): stamp()
        xs=(c%3)*XS; ws=(c%2)*16384
        items=[(s,t) for s in range(2) for t in range(P)]
        q=[]
        def rdw(s,t):
            a("ds_read_b128 %s, v%d offset:%d"%(wreg(2*c+s,t),WA,ws+(s*8+t)*1024)); q.append(("w",s,t))
        def rdx(n):
            s,t=items[n]
            a("ds_read_b128 %s, v%d offset:%d"%(xb(n),XA1 if s else XA0,xs+t*2048)); q.append(("x",n))
        rdw(0,0); rdx(0); rdw(0,1)
        for n in range(1,NXB): rdx(n)
        rdw(1,0); rdw(1,1)
        for n,(s,t) in enumerate(items):
            need=[("x",n),("w",s,0),("w",s,1)]
            last=max(q.index(x) for x in need if x in q) if any(x in q for x in need) else -1
            if last>=0:
                a("s_waitcnt lgkmcnt(%d)"%(len(q)-1-last)); del q[:last+1]
            for tt in range(2):
                src="0" if (c==0 and s==0) else acc(t,tt)
                a("v_mfma_f32_16x16x32_bf16 %s, %s, %s, %s"%(acc(t,tt),xb(n),wreg(2*c+s,tt),src))
            if n+NXB<len(items): rdx(n+NXB)
        assert not q
    def epi_ops(slot,tile):
        ops=[]
        b=ACC0+slot*8
        for r in range(4):
            ops.append("v_mul_f32 v%d, v%d, v%d"%(b+r,b+r,SC0))
            ops.append("v_mul_f32 v%d, v%d, v%d"%(b+4+r,b+4+r,SC1))
        for r in range(4):
            ops.append("v_cvt_pk_bf16_f32 v%d, v%d, v%d"%(b+r,b+r,b+4+r))
        ops.append("s_mov_b32 s54, %d"%(tile*16*9216))
        for r in range(4):
            ops.append("buffer_store_dword v%d, v%d, s[24:27], s54 offen %s"%(b+r,OA[r],stflags))
        return ops
    if sched is None:
        tot=18; sched=[]; done=0
        for u in range(NT2):
            want=-(-tot*(u+1)//NT2)
            want=min(want,P+u)
            sched.append(want-done); done=want
    pend=[(t,t) for t in range(P)]
    free=[P]
    curbase=0
    def tile_body(u,slot,lbase,fill):
        q=[]
        def rdx(n):
            a("ds_read_b128 %s, v%d offset:%d"%(xb(n),XA1 if n&1 else XA0,lbase+(n>>1)*2048)); q.append(n)
        for n in range(NXB): rdx(n)
        fi=0
        for n in range(18):
            last=q.index(n)
            a("s_waitcnt lgkmcnt(%d)"%(len(q)-1-last)); del q[:last+1]
            for tt in range(2):
                src="0" if n==0 else acc(slot,tt)
                a("v_mfma_f32_16x16x32_bf16 %s, %s, %s, %s"%(acc(slot,tt),xb(n),wreg(n,tt),src))
                if tt==0 and n>=2:
                    tgt=-(-len(fill)*(n-1)//16)
                    if fi<tgt: a(fill[fi]); fi+=1
            if n+NXB<18: rdx(n+NXB)
            if n>=2:
                tgt=-(-len(fill)*(n-1)//16)
                while fi<tgt: a(fill[fi]); fi+=1
        assert fi==len(fill)
    for u in range(NT2):
        pj=u//2
        if u==NT2-1:
            a("s_cmp_ge_u32 s36, 2")
            a("s_cbranch_scc1 L_c_end18")
            pend18=list(pend)
        if u%2==0:
            nb_=pslots[pj%4]
            d=nb_-curbase
            if d>0:
                a("v_add_u32 v%d, %d, v%d"%(XA0,d,XA0)); a("v_add_u32 v%d, %d, v%d"%(XA1,d,XA1))
            elif d<0:
                a("v_subrev_u32 v%d, %d, v%d"%(XA0,-d,XA0)); a("v_subrev_u32 v%d, %d, v%d"%(XA1,-d,XA1))
            curbase=nb_
            a("s_barrier")
            stamp()
        slot=free.pop(0)
        fill=[]
        for _ in range(sched[u]):
            sl,tl=pend.pop(0); fill+=epi_ops(sl,tl); free.append(sl)
        tile_body(u,slot,(u%2)*18432,fill)
        pend.append((slot,P+u))
    a("s_nop 7")
    for sl,tl in pend:
        for o in epi_ops(sl,tl): a(o)
    sv=nst[0]
    stamp()
    a("s_branch L_c_done")
    a.lab("L_c_end18")
    a("s_nop 7")
    for sl,tl in pend18:
        for o in epi_ops(sl,tl): a(o)
    if stamps:
        nst[0]=sv-1; stamp(); stamp()
    a.lab("L_c_done")
    if stamps:
        a("s_waitcnt vmcnt(0)"); stamp(); stamp_out("c")
    a("s_endpgm")
    a.lab("L_prod")
    nst[0]=0
    VQ=2; VXA=[3,4,5,6,7][:XI] if XI<=5 else None; VP=8; VW=9
    TB=16
    QS=[32,64]
    TMP=96
    a("s_sub_u32 s51, s50, 4")
    a("v_lshrrev_b32 v12, 5, v1")
    a("s_mov_b32 s53, %d"%(8*18432))
    a("v_mul_lo_u32 v12, v12, s53")
    a("v_and_b32 v13, 31, v1")
    a("v_lshl_add_u32 v12, v13, 4, v12")
    a("s_lshl_b32 s39, s35, 9")
    a("s_mul_i32 s52, s51, %d"%(16*18432))
    a("s_add_u32 s39, s39, s52")
    a("v_add_u32 v%d, s39, v12"%VQ)
    for j in range(1,8): a("s_mov_b32 s%d, %d"%(94+j-1 if False else 54+j,j*18432)) if False else None
    SJ=[None]+[94+j for j in range(7)]
    for j in range(1,8): a("s_mov_b32 s%d, %d"%(SJ[j],j*18432))
    a("s_waitcnt lgkmcnt(0)")
    a("s_mov_b32 s20, s6"); a("s_mov_b32 s21, s7")
    a("s_mov_b32 s16, s4"); a("s_mov_b32 s17, s5")
    def issue_q(st):
        L=[]
        for j in range(8):
            r=QS[st]+4*j
            L.append("buffer_load_dwordx4 v[%d:%d], v%d, s[20:23], %s offen"%(r,r+3,VQ,"0" if j==0 else "s%d"%SJ[j]))
        L.append("v_add_u32 v%d, %d, v%d"%(VQ,64*18432,VQ))
        return L
    for o in issue_q(0): a(o)
    a("v_lshrrev_b32 v12, 3, v1")
    a("v_lshrrev_b32 v13, 1, v12")
    a("v_and_b32 v14, 7, v1")
    a("v_xor_b32 v13, v13, v14")
    a("v_lshlrev_b32 v13, 4, v13")
    a("s_movk_i32 s53, 1152")
    a("v_mul_lo_u32 v12, v12, s53")
    a("s_mul_i32 s52, s37, %d"%(16*1152))
    a("s_mul_i32 s55, s51, %d"%(XI*8*1152))
    a("s_add_u32 s55, s55, s52")
    if XI%2==0:
        for i in range(XI):
            if i&1: a("v_xor_b32 v14, 64, v13")
            else: a("v_mov_b32 v14, v13")
            a("v_add3_u32 v%d, v12, v14, s55"%VXA[i])
            if i: a("v_add_u32 v%d, %d, v%d"%(VXA[i],i*8*1152-(i%4)*1024,VXA[i]))
    else:
        a("s_and_b32 s56, s51, 1"); a("s_lshl_b32 s56, s56, 6")
        a("v_xor_b32 v15, s56, v13")
        for i in range(XI):
            if i&1: a("v_xor_b32 v14, 64, v15")
            else: a("v_mov_b32 v14, v15")
            a("v_add3_u32 v%d, v12, v14, s55"%VXA[i])
            if i: a("v_add_u32 v%d, %d, v%d"%(VXA[i],i*8*1152-(i%4)*1024,VXA[i]))
    a("s_mul_i32 s56, s51, %d"%(XI*1024))
    def issue_x(c):
        L=[]
        L.append("s_movk_i32 s57, %d"%(c*128))
        for i in range(XI):
            if i%4==0:
                L.append("s_add_u32 m0, s56, %d\n s_nop 0"%((c%3)*XS+i*1024))
            L.append("buffer_load_dwordx4 v%d, s[16:19], s57 offen offset:%d lds"%(VXA[i],(i%4)*1024))
        return L
    for o in issue_x(0): a(o)
    a("s_and_b32 s58, s51, 1"); a("s_lshl_b32 s58, s58, 6")
    a("v_xor_b32 v14, s58, v13")
    a("s_mul_i32 s55, s51, %d"%(8*1152))
    a("s_add_u32 s55, s55, s52")
    a("s_add_u32 s55, s55, %d"%(P*16*1152))
    a("v_add3_u32 v%d, v12, v14, s55"%VP)
    a("s_lshr_b32 s58, s51, 1"); a("s_mul_i32 s58, s58, 18432")
    a("s_and_b32 s59, s51, 1"); a("s_lshl_b32 s59, s59, 10"); a("s_add_u32 s58, s58, s59")
    def issue_pair(j):
        L=[]
        for c in range(9):
            L.append("s_add_u32 m0, s58, %d\n s_movk_i32 s57, %d\n buffer_load_dwordx4 v%d, s[16:19], s57 offen lds"%(pslots[j%4]+c*2048,c*128,VP))
        L.append("v_add_u32 v%d, %d, v%d"%(VP,32*1152,VP))
        return L
    a("v_bfe_u32 v12, v1, 3, 2")
    a("v_lshlrev_b32 v12, 11, v12")
    a("v_and_b32 v13, 7, v1")
    a("v_lshl_add_u32 v12, v13, 4, v12")
    a("v_lshrrev_b32 v13, 5, v1")
    a("v_lshl_add_u32 v12, v13, 8, v12")
    a("s_lshr_b32 s59, s51, 1"); a("s_lshl_b32 s59, s59, 13")
    a("s_and_b32 s55, s51, 1"); a("s_lshl_b32 s55, s55, 9")
    a("s_add_u32 s59, s59, s55"); a("s_add_u32 s59, s59, %d"%WS0)
    a("v_add_u32 v%d, s59, v12"%VW)
    HA,HB=xor_tables([v>>8 for v in T16]); LA,LB=xor_tables([v&255 for v in T16])
    tabs=[dw(HA[:4]),dw(HA[4:]),dw(HB[:4]),dw(HB[4:]),dw(LA[:4]),dw(LA[4:]),dw(LB[:4]),dw(LB[4:])]
    for i,t in enumerate(tabs): a("v_mov_b32 v%d, 0x%08x"%(TB+i,t))
    a("s_mov_b32 s28, 0x05010400"); a("s_mov_b32 s29, 0x07030602")
    def dequant(st,wslot,inter):
        ops=[]
        Q=QS[st]
        for e in range(4):
            O=TMP+16+4*e
            for hf in range(2):
                r=[Q+4*(4*hf+j)+e for j in range(4)]
                t0,t1,s1,s2=TMP,TMP+1,TMP+2+hf,TMP+4+hf
                x=TMP+6+4*hf
                ops.append("v_lshl_or_b32 v%d, v%d, 8, v%d"%(t0,r[1],r[0]))
                ops.append("v_lshl_or_b32 v%d, v%d, 8, v%d"%(t1,r[3],r[2]))
                ops.append("v_lshl_or_b32 v%d, v%d, 16, v%d"%(s1,t1,t0))
                ops.append("v_xor_b32 v%d, 0x08080808, v%d"%(s2,s1))
                ops.append("v_perm_b32 v%d, v%d, v%d, v%d"%(x,TB+1,TB+0,s1))
                ops.append("v_perm_b32 v%d, v%d, v%d, v%d"%(x+1,TB+3,TB+2,s2))
                ops.append("v_perm_b32 v%d, v%d, v%d, v%d"%(x+2,TB+5,TB+4,s1))
                ops.append("v_perm_b32 v%d, v%d, v%d, v%d"%(x+3,TB+7,TB+6,s2))
                ops.append("v_xor_b32 v%d, v%d, v%d"%(x,x,x+1))
                ops.append("v_xor_b32 v%d, v%d, v%d"%(x+2,x+2,x+3))
                ops.append("v_perm_b32 v%d, v%d, v%d, s28"%(O+2*hf,x,x+2))
                ops.append("v_perm_b32 v%d, v%d, v%d, s29"%(O+2*hf+1,x,x+2))
            ops.append("ds_write_b128 v%d, v[%d:%d] offset:%d"%(VW,O,O+3,wslot*16384+(e&1)*1024+(e>>1)*128))
        n=len(ops); k=0
        for i,o in enumerate(ops):
            a(o)
            tgt=len(inter)*(i+1)//n
            while k<tgt: a(inter[k]); k+=1
    for c in range(-1,9):
        if c+2<=8:
            for o in issue_q(c%2): a(o)
            first=8; inter=issue_x(c+2); second=XI
        else:
            first=0; inter=issue_pair(c+2-9); second=9
        if c+1<=8:
            a("s_waitcnt vmcnt(%d)"%(XI+first))
            if c in (-1,0,3,7): stamp()
            dequant((c+1)%2,(c+1)%2,inter)
            a("s_waitcnt vmcnt(%d) lgkmcnt(0)"%(first+second))
        else:
            for o in inter: a(o)
            a("s_waitcnt vmcnt(9)")
        a("s_barrier")
        if c in (-1,0,3,7,8): stamp()
    for j in range(1,NPAIR):
        if j+1<NPAIR:
            for o in issue_pair(j+1): a(o)
            a("s_waitcnt vmcnt(9)")
            a("s_barrier")
        else:
            a("s_cmp_ge_u32 s36, 2")
            a("s_cbranch_scc1 L_p_end18")
            a("s_cmp_ge_u32 s51, 2")
            a("s_cbranch_scc1 L_p_nosingle")
            for o in issue_pair(j+1): a(o)
            a("s_waitcnt vmcnt(9)")
            a("s_barrier")
            a("s_waitcnt vmcnt(0)")
            a("s_barrier")
            a("s_branch L_p_done")
            a.lab("L_p_nosingle")
            a("s_waitcnt vmcnt(0)")
            a("s_barrier")
            a("s_barrier")
            a("s_branch L_p_done")
            a.lab("L_p_end18")
            a("s_waitcnt vmcnt(0)")
            a("s_barrier")
            a.lab("L_p_done")
    stamp()
    stamp_out("p")
    a.lab("L_end")
    body=a.txt()
    hdr=open("standalone__normalfloat_lut_nf4__prompt.s.ref").read().split("; Override launch")[0]
    s=hdr+f"""; @launch grid=(252,1,1) block=(512,1,1) lds={LDS}
.amdgcn_target "amdgcn-amd-amdhsa--gfx950"
.text
.globl {KN}
.p2align 8
.type {KN},@function
{KN}:
{body}s_endpgm
.section .rodata,"a"
.p2align 6
.amdhsa_kernel {KN}
  .amdhsa_next_free_vgpr 256
  .amdhsa_next_free_sgpr 102
  .amdhsa_accum_offset 256
  .amdhsa_group_segment_fixed_size 0
  .amdhsa_kernarg_size 48
  .amdhsa_user_sgpr_count 2
  .amdhsa_user_sgpr_kernarg_segment_ptr 1
  .amdhsa_system_sgpr_workgroup_id_x 1
.end_amdhsa_kernel
"""
    return s,LDS
if __name__=="__main__":
    import build
    s,l=gen()
    open("k1.s","w").write(s); build.build("k1.s","k1.co")
    s,l=gen(stamps=True)
    open("k1s.s","w").write(s); build.build("k1s.s","k1s.co")
    s,l=gen(stamps=2)
    open("k1d.s","w").write(s); build.build("k1d.s","k1d.co")
    print("LDS",l)
```

```python
import sys, struct
KN="standalone__normalfloat_lut_nf4__prompt_kernel"
M,N,K=2048,4608,576
NF4=[-1.0,-0.6961928009986877,-0.5250730514526367,-0.39491748809814453,-0.28444138169288635,-0.18477343022823334,-0.09105003625154495,0.0,
     0.07958029955625534,0.16093020141124725,0.24611230194568634,0.33791524171829224,0.44070982933044434,0.5626170039176941,0.7229568362236023,1.0]
def f2bf(f):
    u=struct.unpack('<I',struct.pack('<f',f))[0]
    return ((u+0x7fff+((u>>16)&1))>>16)&0xffff
T16=[f2bf(v) for v in NF4]
def perm_byte(tab8,sel):
    if sel>=13: return 0xff
    if sel==12: return 0
    if sel>=8: return 0xff if tab8[2*(sel-8)+1]&0x80 else 0
    return tab8[sel]
def xor_tables(T):
    A=[0]*8;B=[0]*8
    for _ in range(8):
        for q in range(8):
            A[q]=T[q]^perm_byte(B,q+8)
            B[q]=T[q+8]^perm_byte(A,q+8)
    for q in range(16):
        assert perm_byte(A,q)^perm_byte(B,q^8)==T[q]
    return A,B
def dw(b): return b[0]|b[1]<<8|b[2]<<16|b[3]<<24

class Asm:
    def __init__(s): s.l=[]
    def __call__(s,x): s.l.append(" "+x)
    def lab(s,x): s.l.append(x+":")
    def txt(s): return "\n".join(s.l)+"\n"

def gen(P=8, stflags="sc0 sc1", stamps=False, sched=None, NXB=6, late_inter=True, nostore=False, finec=None, pprio=3, spread=100, tailn=4, grp=1, lead=1, diag=-1, dwg=0, dmode=0):
    assert P%2==0
    a=Asm()
    XI=P//2
    XS=P*2048
    WS0=3*XS
    PA=max(WS0+2*16384,73728)
    PB=PA+36864
    LDS=PB+36864
    assert LDS<=163840
    pslots=[PA,PB,0,36864]
    assert 73728<=PA
    NT2=19-P
    NPAIR=(18-P)//2
    if stamps: a("s_memrealtime s[90:91]"); a("s_memtime s[88:89]")
    a("s_load_dwordx4 s[4:7], s[0:1], 0")
    a("s_load_dwordx4 s[8:11], s[0:1], 16")
    if stamps: a("s_load_dwordx2 s[14:15], s[0:1], %d"%(40 if stamps==1 else 32))
    a("s_cmp_ge_u32 s2, 252")
    a("s_cbranch_scc1 L_end")
    a("v_lshrrev_b32 v2, 6, v0")
    a("v_and_b32 v1, 63, v0")
    a("s_and_b32 s30, s2, 7")
    a("v_readfirstlane_b32 s50, v2")
    a("s_lshr_b32 s31, s2, 3")
    a("s_lshl_b32 s34, s30, 5")
    a("s_sub_u32 s35, s30, 4")
    a("s_max_i32 s35, s35, 0")
    a("s_sub_u32 s34, s34, s35")
    a("s_add_u32 s34, s34, s31")
    a("s_mul_i32 s35, s34, 9363")
    a("s_lshr_b32 s35, s35, 16")
    a("s_mul_i32 s36, s35, 7")
    a("s_sub_u32 s36, s34, s36")
    a("s_mul_i32 s37, s36, 18")
    a("s_min_u32 s38, s36, 2")
    a("s_add_u32 s37, s37, s38")
    a("s_mov_b32 s18, %d"%(M*K*2)); a("s_mov_b32 s19, 0x20000")
    a("s_mov_b32 s22, %d"%(K*N*4)); a("s_mov_b32 s23, 0x20000")
    a("s_mov_b32 s26, %d"%(M*N*2)); a("s_mov_b32 s27, 0x20000")
    a("s_mov_b32 s42, %d"%(N*2)); a("s_mov_b32 s43, 0x20000")
    a("s_cmp_ge_u32 s50, 4")
    a("s_cbranch_scc1 L_prod")
    nst=[0]; role=["c"]
    def stamp():
        if stamps:
            assert nst[0]<14
            if stamps==3:
                if nst[0]==diag and role[0]=="c": a("s_memrealtime s[86:87]")
                nst[0]+=1
                return
            a("s_memtime s[%d:%d]"%(60+2*nst[0],61+2*nst[0])); nst[0]+=1
    def stamp_out(tag):
        if not stamps: return
        a("s_memrealtime s[92:93]")
        a("s_waitcnt vmcnt(0) lgkmcnt(0)")
        a("s_mov_b32 s44, s14"); a("s_mov_b32 s45, s15"); a("s_mov_b32 s46, 0x10000000"); a("s_mov_b32 s47, 0x20000")
        for i in range(14 if stamps!=3 else 0):
            if i<nst[0]: a("s_sub_u32 s%d, s%d, s88"%(60+2*i,60+2*i)); a("v_mov_b32 v%d, s%d"%(16+i,60+2*i))
            else: a("v_mov_b32 v%d, 0"%(16+i))
        a("v_mov_b32 v30, s90"); a("v_mov_b32 v31, s92")
        if stamps==3:
            if tag=="c":
                a("s_lshl_b32 s48, s2, 3")
                a("s_or_b32 s48, s48, s50")
                a("s_cmp_lg_u32 s48, %d"%(dwg*8))
                a("s_cbranch_scc1 L_end")
                a("s_sub_u32 s48, s%d, s90"%(92 if diag<0 else 86))
                a("s_lshl_b32 s48, s48, 2")
                if dmode==1: a("s_mov_b32 s48, 5000")
                if dmode>=2: a("s_mov_b32 s48, %d"%(dmode*3000)); a("s_mov_b32 s92, s90")
                a.lab("L_spin")
                a("s_memrealtime s[60:61]")
                a("s_waitcnt lgkmcnt(0)")
                a("s_sub_u32 s49, s60, s92")
                a("s_cmp_lt_u32 s49, s48")
                a("s_cbranch_scc1 L_spin")
            return
        if stamps==2:
            if tag=="c":
                a("s_mov_b32 s46, 256")
                a("s_cmp_lg_u32 s50, 0")
                a("s_cbranch_scc1 L_end")
                a("s_lshr_b32 s48, s2, 5")
                a("s_mul_i32 s49, s48, 33")
                a("s_cmp_lg_u32 s49, s2")
                a("s_cbranch_scc1 L_end")
                a("s_lshl_b32 s48, s48, 3")
                a("v_mov_b32 v12, s48")
                a("v_cmp_eq_u32 vcc, 0, v1")
                a("s_and_saveexec_b64 s[48:49], vcc")
                a("buffer_store_dwordx2 v[30:31], v12, s[44:47], 0 offen")
            return
        a("s_lshl_b32 s48, s2, 3"); a("s_add_u32 s48, s48, s50"); a("s_lshl_b32 s48, s48, 6")
        a("v_mov_b32 v12, s48")
        a("v_cmp_eq_u32 vcc, 0, v1")
        a("s_and_saveexec_b64 s[48:49], vcc")
        for i in range(4): a("buffer_store_dwordx4 v[%d:%d], v12, s[44:47], 0 offen offset:%d"%(16+4*i,19+4*i,16*i))
    XA0,XA1,WA,SC0,SC1=2,3,4,5,6
    OA=[8,9,10,11]
    XB0=16
    ACC0=XB0+4*NXB
    W0=112
    assert ACC0+(P+1)*8<=W0
    def wreg(s,t): r=W0+(2*s+t)*4; return "v[%d:%d]"%(r,r+3)
    def xb(i): r=XB0+4*(i%NXB); return "v[%d:%d]"%(r,r+3)
    def acc(slot,t): r=ACC0+slot*8+4*t; return "v[%d:%d]"%(r,r+3)
    a("v_and_b32 v12, 15, v1")
    a("v_lshrrev_b32 v13, 4, v1")
    a("s_lshl_b32 s39, s35, 8")
    a("s_lshl_b32 s51, s50, 6")
    a("s_add_u32 s39, s39, s51")
    a("v_lshlrev_b32 v14, 2, v12")
    a("v_add_u32 v14, s39, v14")
    a("s_waitcnt lgkmcnt(0)")
    a("s_mov_b32 s40, s8"); a("s_mov_b32 s41, s9")
    a("s_mov_b32 s24, s10"); a("s_mov_b32 s25, s11")
    a("buffer_load_dword v7, v14, s[40:43], 0 offen")
    a("v_lshrrev_b32 v15, 1, v12")
    a("v_xor_b32 v15, v15, v13")
    a("v_lshlrev_b32 v15, 4, v15")
    a("v_lshl_add_u32 v%d, v12, 7, v15"%XA0)
    a("v_xor_b32 v%d, 64, v%d"%(XA1,XA0))
    a("v_and_b32 v15, 1, v12")
    a("v_lshlrev_b32 v15, 3, v15")
    a("v_lshl_add_u32 v15, v13, 4, v15")
    a("v_lshrrev_b32 v%d, 1, v12"%WA)
    a("v_add_u32 v15, v15, v%d"%WA)
    a("s_lshl_b32 s51, s50, 11")
    a("s_add_u32 s51, s51, %d"%WS0)
    a("v_lshlrev_b32 v15, 4, v15")
    a("v_add_u32 v%d, s51, v15"%WA)
    a("s_mul_i32 s52, s37, %d"%(16*9216))
    a("s_mov_b32 s53, %d"%(4*9216))
    a("v_mul_lo_u32 v15, v13, s53")
    a("v_add3_u32 v%d, v15, v14, s52"%OA[0])
    for r in range(1,4): a("v_add_u32 v%d, %d, v%d"%(OA[r],9216*r,OA[0]))
    a("s_waitcnt vmcnt(0)")
    a("v_lshlrev_b32 v%d, 16, v7"%SC0)
    a("v_and_b32 v%d, 0xffff0000, v7"%SC1)
    for c in range(9):
        a("s_barrier")
        if c in (0,1,4,8): stamp()
        xs=(c%3)*XS; ws=(c%2)*16384
        items=[(s,t) for s in range(2) for t in range(P)]
        q=[]
        def rdw(s,t):
            a("ds_read_b128 %s, v%d offset:%d"%(wreg(2*c+s,t),WA,ws+(s*8+t)*1024)); q.append(("w",s,t))
        def rdx(n):
            s,t=items[n]
            a("ds_read_b128 %s, v%d offset:%d"%(xb(n),XA1 if s else XA0,xs+t*2048)); q.append(("x",n))
        rdw(0,0); rdx(0); rdw(0,1)
        for n in range(1,NXB): rdx(n)
        rdw(1,0); rdw(1,1)
        for n,(s,t) in enumerate(items):
            need=[("x",n),("w",s,0),("w",s,1)]
            last=max(q.index(x) for x in need if x in q) if any(x in q for x in need) else -1
            if last>=0:
                a("s_waitcnt lgkmcnt(%d)"%(len(q)-1-last)); del q[:last+1]
            for tt in range(2):
                src="0" if (c==0 and s==0) else acc(t,tt)
                a("v_mfma_f32_16x16x32_bf16 %s, %s, %s, %s"%(acc(t,tt),xb(n),wreg(2*c+s,tt),src))
            if n+NXB<len(items): rdx(n+NXB)
        assert not q
    def epi_ops(slot,tile):
        ops=[]
        b=ACC0+slot*8
        for r in range(4):
            ops.append("v_mul_f32 v%d, v%d, v%d"%(b+r,b+r,SC0))
            ops.append("v_mul_f32 v%d, v%d, v%d"%(b+4+r,b+4+r,SC1))
        for r in range(4):
            ops.append("v_cvt_pk_bf16_f32 v%d, v%d, v%d"%(b+r,b+r,b+4+r))
        ops.append("s_mov_b32 s54, %d"%(tile*16*9216))
        for r in range(4):
            if not nostore: ops.append("buffer_store_dword v%d, v%d, s[24:27], s54 offen %s"%(b+r,OA[r],stflags))
        return ops
    if sched is None:
        tot=18; sched=[]; done=0
        for u in range(NT2):
            want=-(-tot*(u+1)//NT2)
            want=min(want,P+u)
            sched.append(want-done); done=want
    pend=[(t,t) for t in range(P)]
    free=[P]
    state={"base":0}
    q=[]
    def rd2(n):
        u,k=divmod(n,18)
        if k==0 and u%2==0:
            nb_=pslots[(u//2)%4]; d=nb_-state["base"]
            if d>0:
                a("v_add_u32 v%d, %d, v%d"%(XA0,d,XA0)); a("v_add_u32 v%d, %d, v%d"%(XA1,d,XA1))
            elif d<0:
                a("v_subrev_u32 v%d, %d, v%d"%(XA0,-d,XA0)); a("v_subrev_u32 v%d, %d, v%d"%(XA1,-d,XA1))
            state["base"]=nb_
            a("s_barrier")
            stamp()
        a("ds_read_b128 %s, v%d offset:%d"%(xb(n),XA1 if k&1 else XA0,(u%2)*18432+(k>>1)*2048)); q.append(n)
    def tile_body(u,slot,fill,nlim,k0=0,k1=18,fi=0):
        for k in range(k0,k1):
            n=u*18+k
            last=q.index(n)
            a("s_waitcnt lgkmcnt(%d)"%(len(q)-1-last)); del q[:last+1]
            for tt in range(2):
                src="0" if k==0 else acc(slot,tt)
                a("v_mfma_f32_16x16x32_bf16 %s, %s, %s, %s"%(acc(slot,tt),xb(n),wreg(k,tt),src))
                if tt==0 and k>=2:
                    tgt=-(-len(fill)*(k-1)//16)
                    if fi<tgt: a(fill[fi]); fi+=1
            if n+NXB<nlim: rd2(n+NXB)
            if k>=2:
                tgt=-(-len(fill)*(k-1)//16)
                while fi<tgt: a(fill[fi]); fi+=1
        return fi
    for n in range(NXB): rd2(n)
    for u in range(NT2):
        slot=free.pop(0)
        fill=[]
        for _ in range(sched[u]):
            sl,tl=pend.pop(0); fill+=epi_ops(sl,tl); free.append(sl)
        if u==NT2-2:
            fi=tile_body(u,slot,fill,NT2*18,0,18-NXB)
            a("s_cmp_ge_u32 s36, 2")
            a("s_cbranch_scc1 L_c_end18")
            save18=(u,slot,fill,fi,list(q),list(pend)+[(slot,P+u)])
            fi=tile_body(u,slot,fill,NT2*18,18-NXB,18,fi)
        else:
            fi=tile_body(u,slot,fill,NT2*18)
        assert fi==len(fill)
        pend.append((slot,P+u))
    a("s_nop 7")
    for sl,tl in pend:
        for o in epi_ops(sl,tl): a(o)
    sv=nst[0]
    stamp()
    a("s_branch L_c_done")
    a.lab("L_c_end18")
    u,slot,fill,fi,qq,pend18=save18
    q[:]=qq
    tile_body(u,slot,fill,(NT2-1)*18,18-NXB,18,fi)
    a("s_nop 7")
    for sl,tl in pend18:
        for o in epi_ops(sl,tl): a(o)
    if stamps:
        nst[0]=sv-1; stamp(); stamp()
    a.lab("L_c_done")
    if stamps:
        a("s_waitcnt vmcnt(0)"); stamp(); stamp_out("c")
    a("s_endpgm")
    a.lab("L_prod")
    nst[0]=0; role[0]="p"
    VQ=2; VXA=[3,4,5,6,7][:XI] if XI<=5 else None; VP=8; VW=9
    TB=16
    QS=[32,64]
    TMP=96
    if pprio: a("s_setprio %d"%pprio)
    a("s_sub_u32 s51, s50, 4")
    a("v_lshrrev_b32 v12, 5, v1")
    a("s_mov_b32 s53, %d"%(8*18432))
    a("v_mul_lo_u32 v12, v12, s53")
    a("v_and_b32 v13, 31, v1")
    a("v_lshl_add_u32 v12, v13, 4, v12")
    a("s_lshl_b32 s39, s35, 9")
    a("s_mul_i32 s52, s51, %d"%(16*18432))
    a("s_add_u32 s39, s39, s52")
    a("v_add_u32 v%d, s39, v12"%VQ)
    for j in range(1,8): a("s_mov_b32 s%d, %d"%(94+j-1 if False else 54+j,j*18432)) if False else None
    SJ=[None]+[94+j for j in range(7)]
    for j in range(1,8): a("s_mov_b32 s%d, %d"%(SJ[j],j*18432))
    a("s_waitcnt lgkmcnt(0)")
    a("s_mov_b32 s20, s6"); a("s_mov_b32 s21, s7")
    a("s_mov_b32 s16, s4"); a("s_mov_b32 s17, s5")
    def issue_q(st):
        L=[]
        for j in range(8):
            r=QS[st]+4*j
            L.append("buffer_load_dwordx4 v[%d:%d], v%d, s[20:23], %s offen"%(r,r+3,VQ,"0" if j==0 else "s%d"%SJ[j]))
        L.append("v_add_u32 v%d, %d, v%d"%(VQ,64*18432,VQ))
        return L
    for o in issue_q(0): a(o)
    a("v_lshrrev_b32 v12, 3, v1")
    a("v_lshrrev_b32 v13, 1, v12")
    a("v_and_b32 v14, 7, v1")
    a("v_xor_b32 v13, v13, v14")
    a("v_lshlrev_b32 v13, 4, v13")
    a("s_movk_i32 s53, 1152")
    a("v_mul_lo_u32 v12, v12, s53")
    a("s_mul_i32 s52, s37, %d"%(16*1152))
    a("s_mul_i32 s55, s51, %d"%(XI*8*1152))
    a("s_add_u32 s55, s55, s52")
    if XI%2==0:
        for i in range(XI):
            if i&1: a("v_xor_b32 v14, 64, v13")
            else: a("v_mov_b32 v14, v13")
            a("v_add3_u32 v%d, v12, v14, s55"%VXA[i])
            if i: a("v_add_u32 v%d, %d, v%d"%(VXA[i],i*8*1152-(i%4)*1024,VXA[i]))
    else:
        a("s_and_b32 s56, s51, 1"); a("s_lshl_b32 s56, s56, 6")
        a("v_xor_b32 v15, s56, v13")
        for i in range(XI):
            if i&1: a("v_xor_b32 v14, 64, v15")
            else: a("v_mov_b32 v14, v15")
            a("v_add3_u32 v%d, v12, v14, s55"%VXA[i])
            if i: a("v_add_u32 v%d, %d, v%d"%(VXA[i],i*8*1152-(i%4)*1024,VXA[i]))
    a("s_mul_i32 s56, s51, %d"%(XI*1024))
    def issue_x(c):
        L=[]
        L.append("s_movk_i32 s57, %d"%(c*128))
        for i in range(XI):
            if i%4==0:
                L.append("s_add_u32 m0, s56, %d\n s_nop 0"%((c%3)*XS+i*1024))
            L.append("buffer_load_dwordx4 v%d, s[16:19], s57 offen offset:%d lds"%(VXA[i],(i%4)*1024))
        return L
    for o in issue_x(0): a(o)
    a("s_and_b32 s58, s51, 1"); a("s_lshl_b32 s58, s58, 6")
    a("v_xor_b32 v14, s58, v13")
    a("s_mul_i32 s55, s51, %d"%(8*1152))
    a("s_add_u32 s55, s55, s52")
    a("s_add_u32 s55, s55, %d"%(P*16*1152))
    a("v_add3_u32 v%d, v12, v14, s55"%VP)
    a("s_lshr_b32 s58, s51, 1"); a("s_mul_i32 s58, s58, 18432")
    a("s_and_b32 s59, s51, 1"); a("s_lshl_b32 s59, s59, 10"); a("s_add_u32 s58, s58, s59")
    def issue_pair(j):
        L=[]
        for c in range(9):
            L.append("s_add_u32 m0, s58, %d\n s_movk_i32 s57, %d\n buffer_load_dwordx4 v%d, s[16:19], s57 offen lds"%(pslots[j%4]+c*2048,c*128,VP))
        L.append("v_add_u32 v%d, %d, v%d"%(VP,32*1152,VP))
        return L
    a("v_bfe_u32 v12, v1, 3, 2")
    a("v_lshlrev_b32 v12, 11, v12")
    a("v_and_b32 v13, 7, v1")
    a("v_lshl_add_u32 v12, v13, 4, v12")
    a("v_lshrrev_b32 v13, 5, v1")
    a("v_lshl_add_u32 v12, v13, 8, v12")
    a("s_lshr_b32 s59, s51, 1"); a("s_lshl_b32 s59, s59, 13")
    a("s_and_b32 s55, s51, 1"); a("s_lshl_b32 s55, s55, 9")
    a("s_add_u32 s59, s59, s55"); a("s_add_u32 s59, s59, %d"%WS0)
    a("v_add_u32 v%d, s59, v12"%VW)
    HA,HB=xor_tables([v>>8 for v in T16]); LA,LB=xor_tables([v&255 for v in T16])
    tabs=[dw(HA[:4]),dw(HA[4:]),dw(HB[:4]),dw(HB[4:]),dw(LA[:4]),dw(LA[4:]),dw(LB[:4]),dw(LB[4:])]
    for i,t in enumerate(tabs): a("v_mov_b32 v%d, 0x%08x"%(TB+i,t))
    a("s_mov_b32 s28, 0x05010400"); a("s_mov_b32 s29, 0x07030602")
    def dequant(st,wslot,inter0,inter,wbase,fine=False):
        Q=QS[st]
        halves=[]
        for hf in range(2):
            stages=[[] for _ in range(8)]
            for e in range(4):
                O=TMP+32+4*e
                r=[Q+4*(4*hf+j)+e for j in range(4)]
                b=TMP+8*e
                t0,t1,s1,s2,x=b,b+1,b+2,b+3,b+4
                stages[0].append("v_lshl_or_b32 v%d, v%d, 8, v%d"%(t0,r[1],r[0]))
                stages[0].append("v_lshl_or_b32 v%d, v%d, 8, v%d"%(t1,r[3],r[2]))
                stages[1].append("v_lshl_or_b32 v%d, v%d, 16, v%d"%(s1,t1,t0))
                stages[2].append("v_xor_b32 v%d, 0x08080808, v%d"%(s2,s1))
                stages[3].append("v_perm_b32 v%d, v%d, v%d, v%d"%(x,TB+1,TB+0,s1))
                stages[3].append("v_perm_b32 v%d, v%d, v%d, v%d"%(x+2,TB+5,TB+4,s1))
                stages[4].append("v_perm_b32 v%d, v%d, v%d, v%d"%(x+1,TB+3,TB+2,s2))
                stages[4].append("v_perm_b32 v%d, v%d, v%d, v%d"%(x+3,TB+7,TB+6,s2))
                stages[5].append("v_xor_b32 v%d, v%d, v%d"%(x,x,x+1))
                stages[5].append("v_xor_b32 v%d, v%d, v%d"%(x+2,x+2,x+3))
                stages[6].append("v_perm_b32 v%d, v%d, v%d, s28"%(O+2*hf,x,x+2))
                stages[6].append("v_perm_b32 v%d, v%d, v%d, s29"%(O+2*hf+1,x,x+2))
                if hf==1:
                    stages[7].append("ds_write_b128 v%d, v[%d:%d] offset:%d"%(VW,O,O+3,wslot*16384+(e&1)*1024+(e>>1)*128))
            halves.append([o for st_ in stages for o in st_])
        allint=inter0+inter
        isld=[("buffer_load" in o) for o in allint]
        nld=sum(isld)
        ntail=min(tailn,nld)
        nsp=nld-ntail
        ops=halves[0]+halves[1]
        k=0; issued=0
        def emit_until(cnt):
            nonlocal k,issued
            while issued<cnt:
                a(allint[k]); issued+=isld[k]; k+=1
        if fine: stamp()
        a("s_waitcnt vmcnt(%d)"%(wbase+4))
        if fine: stamp()
        for i,o in enumerate(ops):
            if i==len(halves[0]):
                if fine: stamp()
                a("s_waitcnt vmcnt(%d)"%(wbase+issued))
                if fine: stamp()
            if i<96:
                g=grp
                tgt=min(nsp,((i*nsp*spread)//(96*100*g)+lead)*g)
                emit_until(tgt)
            if i==96 and fine: stamp()
            a(o)
        if fine: stamp()
        while k<len(allint): a(allint[k]); k+=1
        if fine: stamp()
    for c in range(-1,9):
        if c+2<=8:
            inter0=issue_q(c%2)
            first=8; inter=issue_x(c+2); second=XI
        else:
            pl=issue_pair(c+2-9)
            inter0=pl[:5]; inter=pl[5:]
            first=5; second=4
        pre=0
        if c==-1:
            for o in inter0: a(o)
            inter0=[]; pre=first
        if c+1<=8:
            if c in (-1,0,3,7) and stamps and finec is None:
                a("s_waitcnt vmcnt(%d)"%(XI+4+pre)); stamp()
            dequant((c+1)%2,(c+1)%2,inter0,inter,XI+pre,fine=(c==finec))
            a("s_waitcnt vmcnt(%d) lgkmcnt(0)"%(first+second))
            if c==finec: stamp()
        else:
            for o in inter0+inter: a(o)
            a("s_waitcnt vmcnt(9)")
        a("s_barrier")
        if (finec is None and c in (-1,0,3,7,8)) or (finec is not None and c in (finec-1,finec)): stamp()
    for j in range(1,NPAIR):
        if j+1<NPAIR:
            for o in issue_pair(j+1): a(o)
            a("s_waitcnt vmcnt(9)")
            a("s_barrier")
        else:
            a("s_cmp_ge_u32 s36, 2")
            a("s_cbranch_scc1 L_p_end18")
            a("s_cmp_ge_u32 s51, 2")
            a("s_cbranch_scc1 L_p_nosingle")
            for o in issue_pair(j+1): a(o)
            a("s_waitcnt vmcnt(9)")
            a("s_barrier")
            a("s_waitcnt vmcnt(0)")
            a("s_barrier")
            a("s_branch L_p_done")
            a.lab("L_p_nosingle")
            a("s_waitcnt vmcnt(0)")
            a("s_barrier")
            a("s_barrier")
            a("s_branch L_p_done")
            a.lab("L_p_end18")
            a("s_waitcnt vmcnt(0)")
            a("s_barrier")
            a.lab("L_p_done")
    stamp()
    stamp_out("p")
    a.lab("L_end")
    body=a.txt()
    hdr=open("standalone__normalfloat_lut_nf4__prompt.s.ref").read().split("; Override launch")[0]
    s=hdr+f"""; @launch grid=(252,1,1) block=(512,1,1) lds={LDS}
.amdgcn_target "amdgcn-amd-amdhsa--gfx950"
.text
.globl {KN}
.p2align 8
.type {KN},@function
{KN}:
{body}s_endpgm
.section .rodata,"a"
.p2align 6
.amdhsa_kernel {KN}
  .amdhsa_next_free_vgpr 256
  .amdhsa_next_free_sgpr 102
  .amdhsa_accum_offset 256
  .amdhsa_group_segment_fixed_size 0
  .amdhsa_kernarg_size 48
  .amdhsa_user_sgpr_count 2
  .amdhsa_user_sgpr_kernarg_segment_ptr 1
  .amdhsa_system_sgpr_workgroup_id_x 1
.end_amdhsa_kernel
"""
    return s,LDS
if __name__=="__main__":
    import build
    def mk(name,**kw):
        s,l=gen(**kw)
        open(name+".s","w").write(s); build.build(name+".s",name+".co")
        print(name,"LDS",l)
    for arg in sys.argv[1:]:
        name,_,kws=arg.partition(":")
        kw=eval("dict(%s)"%kws)
        mk(name,**kw)
```

```python
import sys, struct
from gen import KN,M,N,K,T16,xor_tables,dw,Asm

def gen(P=8, stflags="nt", lastflags="sc0 sc1", stamps=0, nostore=False, finec=None, finew=None,
        pprio=0, cprio=0, diag=-1, dwg=0, dmode=0, codepf=True, vpf=5, vpfc=8, NX1=8, NX2=9, wstep=2,
        bsched=None, xahead=4, alignc=True, lag=1):
    assert P==8
    a=Asm()
    CPL=10
    XI=P//2
    XS=P*2048
    WS0=3*XS
    RING=45056
    def tslot(t): return RING+((t+2)%6)*18432
    LUT=tslot(2)
    STG=155648
    LDS=163840
    NT2=19-P
    if stamps: a("s_memrealtime s[90:91]"); a("s_memtime s[88:89]")
    a("s_load_dwordx4 s[4:7], s[0:1], 0")
    a("s_load_dwordx4 s[8:11], s[0:1], 16")
    if stamps: a("s_load_dwordx2 s[14:15], s[0:1], %d"%(40 if stamps==1 else 32))
    a("s_cmp_ge_u32 s2, 252")
    a("s_cbranch_scc1 L_end")
    a("v_lshrrev_b32 v2, 6, v0")
    a("v_and_b32 v1, 63, v0")
    a("s_and_b32 s30, s2, 7")
    a("v_readfirstlane_b32 s50, v2")
    a("s_lshr_b32 s31, s2, 3")
    a("s_lshl_b32 s34, s30, 5")
    a("s_sub_u32 s35, s30, 4")
    a("s_max_i32 s35, s35, 0")
    a("s_sub_u32 s34, s34, s35")
    a("s_add_u32 s34, s34, s31")
    a("s_mul_i32 s35, s34, 9363")
    a("s_lshr_b32 s35, s35, 16")
    a("s_mul_i32 s36, s35, 7")
    a("s_sub_u32 s36, s34, s36")
    a("s_mul_i32 s37, s36, 18")
    a("s_min_u32 s38, s36, 2")
    a("s_add_u32 s37, s37, s38")
    a("s_mov_b32 s18, %d"%(M*K*2)); a("s_mov_b32 s19, 0x20000")
    a("s_mov_b32 s22, %d"%(K*N*4)); a("s_mov_b32 s23, 0x20000")
    a("s_mov_b32 s26, %d"%(M*N*2)); a("s_mov_b32 s27, 0x20000")
    a("s_mov_b32 s42, %d"%(N*2)); a("s_mov_b32 s43, 0x20000")
    a("s_cmp_lt_u32 s50, 4")
    a("s_cbranch_scc1 L_cons")
    nst=[0]; role=["p"]
    def stamp(f=False):
        if stamps and ((finew is None) or f):
            if nst[0]>=14: return
            if stamps==3:
                if nst[0]==diag and role[0]=="c": a("s_memrealtime s[86:87]")
                nst[0]+=1
                return
            a("s_memtime s[%d:%d]"%(60+2*nst[0],61+2*nst[0])); nst[0]+=1
    def stamp_out(tag):
        if not stamps: return
        a("s_memrealtime s[92:93]")
        a("s_waitcnt vmcnt(0) lgkmcnt(0)")
        if stamps==3:
            if tag=="c":
                a("s_lshl_b32 s48, s2, 3"); a("s_or_b32 s48, s48, s50")
                a("s_cmp_lg_u32 s48, %d"%(dwg*8)); a("s_cbranch_scc1 L_end")
                a("s_sub_u32 s48, s%d, s90"%(92 if diag<0 else 86)); a("s_lshl_b32 s48, s48, 2")
                if dmode==1: a("s_mov_b32 s48, 5000")
                if dmode>=2: a("s_mov_b32 s48, %d"%(dmode*3000)); a("s_mov_b32 s92, s90")
                a.lab("L_spin")
                a("s_memrealtime s[60:61]"); a("s_waitcnt lgkmcnt(0)")
                a("s_sub_u32 s49, s60, s92"); a("s_cmp_lt_u32 s49, s48"); a("s_cbranch_scc1 L_spin")
            return
        a("s_mov_b32 s44, s14"); a("s_mov_b32 s45, s15"); a("s_mov_b32 s46, 0x10000000"); a("s_mov_b32 s47, 0x20000")
        for i in range(14):
            if i<nst[0]: a("s_sub_u32 s%d, s%d, s88"%(60+2*i,60+2*i)); a("v_mov_b32 v%d, s%d"%(16+i,60+2*i))
            else: a("v_mov_b32 v%d, 0"%(16+i))
        a("v_mov_b32 v30, s90"); a("v_mov_b32 v31, s92")
        a("s_lshl_b32 s48, s2, 3"); a("s_add_u32 s48, s48, s50"); a("s_lshl_b32 s48, s48, 6")
        a("v_mov_b32 v12, s48")
        a("v_cmp_eq_u32 vcc, 0, v1")
        a("s_and_saveexec_b64 s[48:49], vcc")
        for i in range(4): a("buffer_store_dwordx4 v[%d:%d], v12, s[44:47], 0 offen offset:%d"%(16+4*i,19+4*i,16*i))

    VQ=2; VXA=[3,4,5,6]; VP=8; VW=9; VL=10; VSR=11; VSR2=12; VSO=15; VPF=16
    QS=[32,64]
    AD=96
    if pprio: a("s_setprio %d"%pprio)
    a("s_sub_u32 s51, s50, 4")
    a("v_lshrrev_b32 v12, 5, v1")
    a("s_mov_b32 s53, %d"%(8*18432))
    a("v_mul_lo_u32 v12, v12, s53")
    a("v_and_b32 v13, 31, v1")
    a("v_lshl_add_u32 v12, v13, 4, v12")
    a("s_lshl_b32 s39, s35, 9")
    a("s_mul_i32 s52, s51, %d"%(16*18432))
    a("s_add_u32 s39, s39, s52")
    a("v_add_u32 v%d, s39, v12"%VQ)
    SJ=[None]+[94+j for j in range(7)]
    for j in range(1,8): a("s_mov_b32 s%d, %d"%(SJ[j],j*18432))
    a("s_waitcnt lgkmcnt(0)")
    a("s_mov_b32 s20, s6"); a("s_mov_b32 s21, s7")
    a("s_mov_b32 s16, s4"); a("s_mov_b32 s17, s5")
    a("s_mov_b32 s24, s10"); a("s_mov_b32 s25, s11")
    def issue_q(st):
        L=[]
        for j in range(8):
            r=QS[st]+4*j
            L.append("buffer_load_dwordx4 v[%d:%d], v%d, s[20:23], %s offen"%(r,r+3,VQ,"0" if j==0 else "s%d"%SJ[j]))
        L.append("v_add_u32 v%d, %d, v%d"%(VQ,64*18432,VQ))
        return L
    for o in issue_q(0): a(o)
    a("v_lshlrev_b32 v%d, 2, v13"%VL)
    a("v_add_u32 v%d, %d, v%d"%(VL,LUT,VL))
    a("v_lshrrev_b32 v12, 3, v1")
    a("v_lshrrev_b32 v13, 1, v12")
    a("v_and_b32 v14, 7, v1")
    a("v_xor_b32 v13, v13, v14")
    a("v_lshlrev_b32 v13, 4, v13")
    a("s_movk_i32 s53, 1152")
    a("v_mul_lo_u32 v12, v12, s53")
    a("s_mul_i32 s52, s37, %d"%(16*1152))
    a("s_mul_i32 s55, s51, %d"%(XI*8*1152))
    a("s_add_u32 s55, s55, s52")
    for i in range(XI):
        if i&1: a("v_xor_b32 v14, 64, v13")
        else: a("v_mov_b32 v14, v13")
        a("v_add3_u32 v%d, v12, v14, s55"%VXA[i])
        if i: a("v_add_u32 v%d, %d, v%d"%(VXA[i],i*8*1152-(i%4)*1024,VXA[i]))
    a("s_mul_i32 s56, s51, %d"%(XI*1024))
    def issue_x(c):
        L=[]
        for i in range(XI):
            pre=""
            if i%4==0: pre="s_add_u32 m0, s56, %d\n s_movk_i32 s57, %d\n "%((c%3)*XS+i*1024,c*128)
            L.append(pre+"buffer_load_dwordx4 v%d, s[16:19], s57 offen offset:%d lds"%(VXA[i],(i%4)*1024))
        return L
    for o in issue_x(0): a(o)
    if codepf:
        a("s_getpc_b64 s[44:45]")
        a.lab("L_pc")
        a("s_and_b32 s46, s31, 3"); a("s_lshl_b32 s46, s46, 2"); a("s_add_u32 s46, s46, s51")
        a("s_mul_i32 s46, s46, %d"%(CPL*128))
        a("s_sub_u32 s44, s44, L_pc-%s"%KN); a("s_subb_u32 s45, s45, 0")
        a("s_add_u32 s44, s44, s46"); a("s_addc_u32 s45, s45, 0")
        for i in range(CPL): a("s_load_dword s33, s[44:45], %d"%(i*128))
    for o in issue_q(1): a(o)
    a("s_and_b32 s58, s51, 1"); a("s_lshl_b32 s59, s58, 6")
    a("v_xor_b32 v14, s59, v13")
    a("s_mul_i32 s55, s58, %d"%(8*1152))
    a("s_add_u32 s55, s55, s52")
    a("s_add_u32 s55, s55, %d"%(P*16*1152))
    a("s_lshr_b32 s32, s51, 1")
    a("s_mul_i32 s59, s32, %d"%(5*128))
    a("s_add_u32 s55, s55, s59")
    a("v_add3_u32 v%d, v12, v14, s55"%VP)
    a("s_lshl_b32 s58, s58, 10")
    a("s_mul_i32 s59, s32, %d"%(5*2048))
    a("s_add_u32 s58, s58, s59")
    lblc=[0]
    def issue_tile(t):
        L=[]
        lblc[0]+=1; lb="L_t%d"%lblc[0]
        L.append("s_cmp_lg_u32 s32, 0\n s_cbranch_scc1 %s\n s_add_u32 m0, s58, %d\n s_mov_b32 s57, %d\n buffer_load_dwordx4 v%d, s[16:19], s57 offen lds\n%s:"%(lb,tslot(t)+4*2048,4*128+t*18432,VP,lb))
        for c in range(4):
            L.append("s_add_u32 m0, s58, %d\n s_mov_b32 s57, %d\n buffer_load_dwordx4 v%d, s[16:19], s57 offen lds"%(tslot(t)+c*2048,c*128+t*18432,VP))
        return L
    a("v_bfe_u32 v12, v1, 3, 2")
    a("v_lshlrev_b32 v12, 11, v12")
    a("v_and_b32 v13, 7, v1")
    a("v_lshl_add_u32 v12, v13, 4, v12")
    a("v_lshrrev_b32 v13, 5, v1")
    a("v_lshl_add_u32 v12, v13, 8, v12")
    a("s_lshr_b32 s59, s51, 1"); a("s_lshl_b32 s59, s59, 13")
    a("s_and_b32 s55, s51, 1"); a("s_lshl_b32 s55, s55, 9")
    a("s_add_u32 s59, s59, s55"); a("s_add_u32 s59, s59, %d"%WS0)
    a("v_add_u32 v%d, s59, v12"%VW)
    a("s_lshl_b32 s59, s51, 10")
    a("v_lshlrev_b32 v12, 4, v1")
    a("v_add_u32 v%d, s59, v12"%VSR)
    a("v_lshrrev_b32 v13, 4, v1")
    a("s_movk_i32 s53, 9216")
    a("v_mul_lo_u32 v13, v13, s53")
    a("v_and_b32 v14, 15, v1")
    a("v_lshl_add_u32 v13, v14, 4, v13")
    a("s_lshl_b32 s59, s37, 4"); a("s_lshl_b32 s55, s51, 2"); a("s_add_u32 s59, s59, s55")
    a("s_mul_i32 s59, s59, 9216"); a("s_lshl_b32 s55, s35, 8"); a("s_add_u32 s59, s59, s55")
    a("v_add_u32 v%d, s59, v13"%VSO)
    a("v_add_u32 v%d, %d, v%d"%(VSR2,STG,VSR))
    if vpf:
        assert vpf*9<=64
        a("s_mul_i32 s55, s31, 9363"); a("s_lshr_b32 s55, s55, 16")
        a("s_lshl_b32 s59, s55, 2"); a("s_add_u32 s59, s59, s51")
        a("s_lshl_b32 s59, s59, 7")
        a("s_add_u32 s53, s37, %d"%(19-vpf)); a("s_mul_i32 s53, s53, 18432")
        a("s_add_u32 s59, s59, s53")
        a("s_cmp_ge_u32 s55, 4"); a("s_cselect_b32 s59, 0x10000000, s59")
        a("v_lshlrev_b32 v%d, 11, v1"%VPF)
        a("v_add_u32 v%d, s59, v%d"%(VPF,VPF))
        a("v_cmp_gt_u32 vcc, %d, v1"%(vpf*9))
        a("v_mov_b32 v14, 0x10000000")
        a("s_nop 1")
        a("v_cndmask_b32 v%d, v14, v%d, vcc"%(VPF,VPF))
    a("s_barrier")
    def dequant(st,wslot,inter,wbase,fine=False):
        Q=QS[st]
        if fine: stamp()
        for hf in range(2):
            a("s_waitcnt vmcnt(%d)"%(wbase+(4 if hf==0 else 0)))
            if fine: stamp()
            for pr in range(2):
                for e in range(4):
                    t=AD+8*hf+4*pr+e
                    a("v_lshl_add_u32 v%d, v%d, 7, v%d"%(t,Q+4*(4*hf+2*pr)+e,VL))
                for e in range(4):
                    t=AD+8*hf+4*pr+e
                    a("v_lshl_add_u32 v%d, v%d, 11, v%d"%(t,Q+4*(4*hf+2*pr+1)+e,t))
                for e in range(4):
                    t=AD+8*hf+4*pr+e
                    if hf==1 and pr==1 and e==3: a("s_waitcnt lgkmcnt(14)")
                    a("ds_read_b32 v%d, v%d"%(AD+16+4*e+2*hf+pr,t))
        if fine: stamp()
        for e in range(4):
            a("s_waitcnt lgkmcnt(3)")
            O=AD+16+4*e
            a("ds_write_b128 v%d, v[%d:%d] offset:%d"%(VW,O,O+3,wslot*16384+(e&1)*1024+(e>>1)*128))
        if fine: stamp()
        for o in inter: a(o)
        if fine: stamp()
    PFI="buffer_load_dword v20, v%d, s[16:19], 0 offen"%VPF
    vq=[]
    for c in range(-1,9):
        if c+2<=8:
            first=8
            if vpf and c==vpfc: a(PFI); first+=1
            if c>=0:
                for o in issue_q(c%2): a(o)
            inter=issue_x(c+2); second=XI
        elif c==7:
            for o in issue_tile(0): a(o)
            inter=issue_tile(1); first=4; second=4
            vq=[("t",0)]*4+[("t",1)]*4
            if vpf and vpfc==7: inter.append(PFI); second+=1; vq.append(("pf",))
        if c+1<=8:
            if c in (-1,0,3,7) and stamps and finec is None and finew is None:
                a("s_waitcnt vmcnt(%d)"%(XI+4+first)); stamp()
            dequant((c+1)%2,(c+1)%2,inter,XI+first,fine=(c==finec))
            a("s_waitcnt vmcnt(%d) lgkmcnt(0)"%(first+second))
            if c==finec: stamp()
            a("s_barrier")
            if (finec is None and c in (-1,0,3,7)) or (finec is not None and c in (finec-1,finec)): stamp()
    if pprio: a("s_setprio 0")
    twin={2:-1,3:-1}
    for t in range(4,NT2): twin[t]=max(0,t-xahead)
    if bsched is None: bsched=[2,1,1,1,1,1]
    assert sum(bsched)==P-1
    bl=0
    for u in range(-1,NT2+1):
        fw=finew is not None and finew<=u<finew+3
        if u==NT2:
            pass
        items=[]
        if u>=1: items.append((VSR2,((u-1)&1)*4096,P+u-2))
        if 0<=u<len(bsched):
            for _ in range(bsched[u]): items.append((VSR,bl*4096,bl)); bl+=1
        for i,(r,off,t) in enumerate(items):
            a("ds_read_b128 v[%d:%d], v%d offset:%d"%(128+4*i,131+4*i,r,off))
        for t,w in twin.items():
            if w==u:
                if t==NT2-1:
                    a("s_cmp_ge_u32 s36, 2"); a("s_cbranch_scc1 L_nolast")
                    for o in issue_tile(t): a(o)
                    a.lab("L_nolast")
                    vq.append(("mark",t))
                else:
                    for o in issue_tile(t): a(o)
                    vq+= [("t",t)]*4
        if vpf and vpfc-9==u: a(PFI); vq.append(("pf",))
        if fw: stamp(True)
        for i,(r,off,t) in enumerate(items):
            a("s_waitcnt lgkmcnt(%d)"%(len(items)-1-i))
            if not nostore:
                a("s_mov_b32 s54, %d"%(t*16*9216))
                a("buffer_store_dwordx4 v[%d:%d], v%d, s[24:27], s54 offen %s"%(128+4*i,131+4*i,VSO,stflags)); vq.append(("s",t))
        if fw: stamp(True)
        if u==NT2-1:
            a("s_cmp_ge_u32 s36, 2"); a("s_cbranch_scc1 L_p_done")
        if u<NT2:
            t=u+1
            idx=[i for i,x in enumerate(vq) if x in (("t",t),("mark",t))]
            if idx:
                n=len([x for x in vq[idx[-1]+1:] if x[0]!="mark"])
                a("s_waitcnt vmcnt(%d)"%n); del vq[:idx[-1]+1]
            if fw: stamp(True)
            a("s_barrier")
            if finew is not None and finew-1<=u<finew+3: stamp(True)
            if u in (-1,1,3,5,7): stamp()
    a.lab("L_p_done")
    if stamps: a("s_waitcnt vmcnt(0)"); stamp()
    stamp_out("p")
    a("s_endpgm")

    if alignc: a(".p2align 8")
    a.lab("L_cons")
    nst[0]=0; role[0]="c"
    XA0,XA1,WA,SC0,SC1=2,3,4,5,6
    XL0=7
    OA=[8,9,10,11]
    SG=12; SG2=13
    XB0=16
    ACC0=XB0+4*NX1
    W0=112
    assert ACC0+P*8<=W0
    def wreg(s,t): r=W0+(2*s+t)*4; return "v[%d:%d]"%(r,r+3)
    def xb(i): r=XB0+4*(i%NX1); return "v[%d:%d]"%(r,r+3)
    def xb2(i): r=XB0+4*(i%NX2); return "v[%d:%d]"%(r,r+3)
    def accr(slot): return ACC0+slot*8
    def acc(slot,t): r=accr(slot)+4*t; return "v[%d:%d]"%(r,r+3)
    assert XB0+4*NX2<=accr(P-2)
    if cprio: a("s_setprio %d"%cprio)
    a("v_and_b32 v16, 15, v1")
    a("v_lshrrev_b32 v17, 4, v1")
    a("s_lshl_b32 s39, s35, 8")
    a("s_lshl_b32 s51, s50, 6")
    a("s_add_u32 s39, s39, s51")
    a("v_lshlrev_b32 v14, 2, v16")
    a("v_add_u32 v14, s39, v14")
    HA,HB=xor_tables([v>>8 for v in T16]); LA,LB=xor_tables([v&255 for v in T16])
    tabs=[dw(HA[:4]),dw(HA[4:]),dw(HB[:4]),dw(HB[4:]),dw(LA[:4]),dw(LA[4:]),dw(LB[:4]),dw(LB[4:])]
    TB=32
    for i,t in enumerate(tabs): a("v_mov_b32 v%d, 0x%08x"%(TB+i,t))
    a("v_lshrrev_b32 v40, 4, v0")
    a("v_lshl_or_b32 v40, v40, 8, v16")
    a("v_xor_b32 v41, 0x0808, v40")
    a("v_perm_b32 v42, v%d, v%d, v40"%(TB+1,TB))
    a("v_perm_b32 v43, v%d, v%d, v41"%(TB+3,TB+2))
    a("v_perm_b32 v44, v%d, v%d, v40"%(TB+5,TB+4))
    a("v_perm_b32 v45, v%d, v%d, v41"%(TB+7,TB+6))
    a("v_xor_b32 v42, v42, v43")
    a("v_xor_b32 v44, v44, v45")
    a("s_mov_b32 s28, 0x05010400")
    a("v_perm_b32 v48, v42, v44, s28")
    a("v_mov_b32 v49, v48"); a("v_mov_b32 v50, v48"); a("v_mov_b32 v51, v48")
    a("v_and_b32 v46, 7, v0")
    a("v_lshlrev_b32 v46, 4, v46")
    a("v_lshl_add_u32 v46, v0, 7, v46")
    a("v_add_u32 v46, %d, v46"%LUT)
    assert LUT%128==0
    a("s_waitcnt lgkmcnt(0)")
    a("s_mov_b32 s40, s8"); a("s_mov_b32 s41, s9")
    a("s_mov_b32 s24, s10"); a("s_mov_b32 s25, s11")
    a("buffer_load_dword v15, v14, s[40:43], 0 offen")
    for j in range(8):
        if j: a("v_xor_b32 v47, %d, v46"%(16*j))
        a("ds_write_b128 v%d, v[48:51]"%(47 if j else 46))
    a("v_lshrrev_b32 v52, 1, v16")
    a("v_xor_b32 v52, v52, v17")
    a("v_lshlrev_b32 v52, 4, v52")
    a("v_lshl_add_u32 v%d, v16, 7, v52"%XA0)
    a("v_xor_b32 v%d, 64, v%d"%(XA1,XA0))
    a("v_mov_b32 v%d, v%d"%(XL0,XA0))
    a("v_and_b32 v52, 1, v16")
    a("v_lshlrev_b32 v52, 3, v52")
    a("v_lshl_add_u32 v52, v17, 4, v52")
    a("v_lshrrev_b32 v%d, 1, v16"%WA)
    a("v_add_u32 v52, v52, v%d"%WA)
    a("s_lshl_b32 s51, s50, 11")
    a("s_add_u32 s51, s51, %d"%WS0)
    a("v_lshlrev_b32 v52, 4, v52")
    a("v_add_u32 v%d, s51, v52"%WA)
    a("s_cmp_lt_u32 s36, 2")
    a("s_cselect_b32 s55, %d, %d"%(NT2,NT2-1))
    a("s_add_u32 s52, s37, s55")
    a("s_add_u32 s52, s52, %d"%(P-1))
    a("s_mul_i32 s52, s52, %d"%(16*9216))
    a("s_mov_b32 s53, %d"%(4*9216))
    a("v_mul_lo_u32 v52, v17, s53")
    a("v_add3_u32 v%d, v52, v14, s52"%OA[0])
    for r in range(1,4): a("v_add_u32 v%d, %d, v%d"%(OA[r],9216*r,OA[0]))
    a("s_lshl_b32 s51, s50, 6")
    a("v_lshlrev_b32 v52, 10, v17")
    a("v_lshl_add_u32 v52, v16, 2, v52")
    a("v_add_u32 v%d, s51, v52"%SG)
    a("v_add_u32 v%d, %d, v%d"%(SG2,STG,SG))
    a("s_mov_b32 s56, %d"%tslot(0))
    a("s_waitcnt lgkmcnt(0)")
    a("s_barrier")
    a("s_waitcnt vmcnt(0)")
    a("v_lshlrev_b32 v%d, 16, v15"%SC0)
    a("v_and_b32 v%d, 0xffff0000, v15"%SC1)
    def cvt_ops(slot):
        b=accr(slot); ops=[]
        for r in range(4):
            ops.append("v_mul_f32 v%d, v%d, v%d"%(b+r,b+r,SC0))
            ops.append("v_mul_f32 v%d, v%d, v%d"%(b+4+r,b+4+r,SC1))
        for r in range(4):
            ops.append("v_cvt_pk_bf16_f32 v%d, v%d, v%d"%(b+r,b+r,b+4+r))
        return ops,b
    def stage_ops(slot,reg,i):
        ops,b=cvt_ops(slot)
        for r in (0,2):
            ops.append("ds_write2st64_b32 v%d, v%d, v%d offset0:%d offset1:%d"%(reg,b+r,b+r+1,i*16+r,i*16+r+1))
        return ops
    for c in range(9):
        a("s_barrier")
        if c in (0,1,4,8): stamp()
        xs=(c%3)*XS; ws=(c%2)*16384
        if c<8: items=[(s,t) for s in range(2) for t in range(P)]
        else: items=[(s,t) for t in range(P) for s in range(2)]
        q=[]
        def rdw(s,t):
            a("ds_read_b128 %s, v%d offset:%d"%(wreg(2*c+s,t),WA,ws+(s*8+t)*1024)); q.append(("w",s,t))
        def rdx(n):
            s,t=items[n]
            a("ds_read_b128 %s, v%d offset:%d"%(xb(n),XA1 if s else XA0,xs+t*2048)); q.append(("x",n))
        if c<8:
            rdw(0,0); rdx(0); rdw(0,1)
            for n in range(1,NX1): rdx(n)
            rdw(1,0); rdw(1,1)
        else:
            rdw(0,0); rdx(0); rdw(0,1); rdw(1,0); rdx(1); rdw(1,1)
            for n in range(2,NX1): rdx(n)
        fill=[]
        def em(o):
            a(o)
            if o.startswith("ds_write"): q.append(("sw",))
        for n,(s,t) in enumerate(items):
            need=[("x",n),("w",s,0),("w",s,1)]
            last=max([q.index(x) for x in need if x in q]+[-1])
            if last>=0:
                a("s_waitcnt lgkmcnt(%d)"%(len(q)-1-last)); del q[:last+1]
            if c==8 and s==0 and t>=2: fill+=stage_ops(t-2,SG,t-2)
            for tt in range(2):
                src="0" if (c==0 and s==0) else acc(t,tt)
                if c==8 and t==2 and s==0 and tt==0: a("s_nop 3")
                a("v_mfma_f32_16x16x32_bf16 %s, %s, %s, %s"%(acc(t,tt),xb(n),wreg(2*c+s,tt),src))
                for _ in range(4 if tt==0 else 3):
                    if fill: em(fill.pop(0))
            if n+NX1<len(items): rdx(n+NX1)
        if c==8:
            fill+=stage_ops(P-2,SG,P-2)
            for o in fill: em(o)
            a("v_add_u32 v%d, s56, v%d"%(XA0,XL0))
            a("v_xor_b32 v%d, 64, v%d"%(XA1,XA0))
            a("s_waitcnt lgkmcnt(0)")
    assert RING%128==0
    stamp()
    a("s_barrier")
    stamp()
    SL=[P-2,P-1]
    def rd(n36):
        u,k=divmod(n36,18)
        a("ds_read_b128 %s, v%d offset:%d"%(xb2(n36),XA1 if k&1 else XA0,u*18432+(k>>1)*2048))
    LA=NX2-lag
    for n in range(LA): rd(n)
    a.lab("L_loop")
    q=list(range(LA))
    for hf in range(2):
        slot=SL[hf]
        fill=stage_ops(SL[1-hf],SG2,hf)
        kb=18-LA
        def fl(cnt):
            for _ in range(cnt):
                if fill:
                    o=fill.pop(0); a(o)
                    if o.startswith("ds_write"): q.append("w")
        def doread(k,n):
            if k==kb:
                assert not fill
                if "w" in q:
                    last=len(q)-1-q[::-1].index("w")
                    a("s_waitcnt lgkmcnt(%d)"%(len(q)-1-last)); del q[:last+1]
                a("s_barrier")
            nn=n+LA
            rd(nn%36); q.append(nn)
            if k==kb-1 and hf==1:
                a("v_add_u32 v%d, s56, v%d"%(XA0,XL0))
        for k in range(18):
            n=hf*18+k
            if n in q:
                tgt=n
                for d in range(1,wstep):
                    if n+d in q: tgt=n+d
                last=q.index(tgt)
                a("s_waitcnt lgkmcnt(%d)"%(len(q)-1-last)); del q[:last+1]
            src="0" if k==0 else acc(slot,0)
            a("v_mfma_f32_16x16x32_bf16 %s, %s, %s, %s"%(acc(slot,0),xb2(n),wreg(k,0),src))
            if lag:
                doread(k,n)
                if k>=2: fl(1)
            else:
                if k>=2: fl(2)
            src="0" if k==0 else acc(slot,1)
            a("v_mfma_f32_16x16x32_bf16 %s, %s, %s, %s"%(acc(slot,1),xb2(n),wreg(k,1),src))
            nextwait=(n+1) in q
            if lag:
                if k>=2 or (k==1): fl(1 if nextwait else 2)
            else:
                if k>=2 and not nextwait: fl(1)
                doread(k,n)
            if hf==1:
                if k==0: a("s_add_u32 s56, s56, 36864"); a("s_cmp_ge_u32 s56, %d"%(RING+3*36864))
                if k==0: a("s_cselect_b32 s56, %d, s56"%RING)
                if k==kb-1: a("v_xor_b32 v%d, 64, v%d"%(XA1,XA0))
            if k==16: a("s_sub_u32 s55, s55, 1")
            if k==17: a("s_cmp_lg_u32 s55, 0")
        a("s_cbranch_scc1 %s"%("L_half" if hf==0 else "L_loop"))
        sv=nst[0]
        a("s_nop 6")
        ops,b=cvt_ops(slot)
        for o in ops: a(o)
        if not nostore:
            for r in range(4): a("buffer_store_dword v%d, v%d, s[24:27], 0 offen %s"%(b+r,OA[r],lastflags))
        if stamps: a("s_branch L_c_done")
        else: a("s_endpgm")
        if hf==0: a.lab("L_half")
    qq=[x-36 for x in q]
    assert qq==list(range(LA))[-len(qq):], qq
    a.lab("L_c_done")
    if stamps:
        stamp(); a("s_waitcnt vmcnt(0)"); stamp(); stamp_out("c")
    a.lab("L_end")
    body=a.txt()
    hdr=open("standalone__normalfloat_lut_nf4__prompt.s.ref").read().split("; Override launch")[0]
    s=hdr+f"""; @launch grid=(252,1,1) block=(512,1,1) lds={LDS}
.amdgcn_target "amdgcn-amd-amdhsa--gfx950"
.text
.globl {KN}
.p2align 8
.type {KN},@function
{KN}:
{body}s_endpgm
.fill ({KN}+{16*CPL*128}-.)/4, 4, 0xbf810000
.section .rodata,"a"
.p2align 6
.amdhsa_kernel {KN}
  .amdhsa_next_free_vgpr 256
  .amdhsa_next_free_sgpr 102
  .amdhsa_accum_offset 256
  .amdhsa_group_segment_fixed_size 0
  .amdhsa_kernarg_size 48
  .amdhsa_user_sgpr_count 2
  .amdhsa_user_sgpr_kernarg_segment_ptr 1
  .amdhsa_system_sgpr_workgroup_id_x 1
.end_amdhsa_kernel
"""
    return s,LDS
if __name__=="__main__":
    import build
    def mk(name,**kw):
        s,l=gen(**kw)
        open(name+".s","w").write(s); build.build(name+".s",name+".co")
        print(name,"LDS",l,"barriers",s.count("s_barrier"))
    for arg in sys.argv[1:]:
        name,_,kws=arg.partition(":")
        kw=eval("dict(%s)"%kws)
        mk(name,**kw)
```

```python
import sys, struct
from gen import KN,M,N,K,T16,xor_tables,dw,Asm

def gen(P=8, stflags="nt", lastflags="sc0 sc1", stamps=0, nostore=False, finec=None, finew=None,
        pprio=0, cprio=0, diag=-1, dwg=0, dmode=0, codepf=True, vpf=5, vpfc=8, NX1=8, NX2=9, wstep=2,
        bsched=None, xahead=4, alignc=True, lag=1, fine8=False, nodumpw=False):
    assert P==8
    a=Asm()
    CPL=10
    XI=P//2
    XS=P*2048
    WS0=3*XS
    RING=45056
    def tslot(t): return RING+((t+2)%6)*18432
    LUT=tslot(2)
    STG=155648
    LDS=163840
    NT2=19-P
    if stamps: a("s_memrealtime s[90:91]"); a("s_memtime s[88:89]")
    a("s_load_dwordx4 s[4:7], s[0:1], 0")
    a("s_load_dwordx4 s[8:11], s[0:1], 16")
    if stamps: a("s_load_dwordx2 s[14:15], s[0:1], %d"%(40 if stamps==1 else 32))
    a("s_cmp_ge_u32 s2, 252")
    a("s_cbranch_scc1 L_end")
    a("v_lshrrev_b32 v2, 6, v0")
    a("v_and_b32 v1, 63, v0")
    a("s_and_b32 s30, s2, 7")
    a("v_readfirstlane_b32 s50, v2")
    a("s_lshr_b32 s31, s2, 3")
    a("s_lshl_b32 s34, s30, 5")
    a("s_sub_u32 s35, s30, 4")
    a("s_max_i32 s35, s35, 0")
    a("s_sub_u32 s34, s34, s35")
    a("s_add_u32 s34, s34, s31")
    a("s_mul_i32 s35, s34, 9363")
    a("s_lshr_b32 s35, s35, 16")
    a("s_mul_i32 s36, s35, 7")
    a("s_sub_u32 s36, s34, s36")
    a("s_mul_i32 s37, s36, 18")
    a("s_min_u32 s38, s36, 2")
    a("s_add_u32 s37, s37, s38")
    a("s_mov_b32 s18, %d"%(M*K*2)); a("s_mov_b32 s19, 0x20000")
    a("s_mov_b32 s22, %d"%(K*N*4)); a("s_mov_b32 s23, 0x20000")
    a("s_mov_b32 s26, %d"%(M*N*2)); a("s_mov_b32 s27, 0x20000")
    a("s_mov_b32 s42, %d"%(N*2)); a("s_mov_b32 s43, 0x20000")
    a("s_cmp_lt_u32 s50, 4")
    a("s_cbranch_scc1 L_cons")
    nst=[0]; role=["p"]
    def stamp(f=False):
        if stamps and ((finew is None) or f):
            if nst[0]>=14: return
            if stamps==3:
                if nst[0]==diag and role[0]=="c": a("s_memrealtime s[86:87]")
                nst[0]+=1
                return
            a("s_memtime s[%d:%d]"%(60+2*nst[0],61+2*nst[0])); nst[0]+=1
    def stamp_out(tag):
        if not stamps: return
        a("s_memrealtime s[92:93]")
        a("s_waitcnt vmcnt(0) lgkmcnt(0)")
        if stamps==3:
            if tag=="c":
                a("s_lshl_b32 s48, s2, 3"); a("s_or_b32 s48, s48, s50")
                a("s_cmp_lg_u32 s48, %d"%(dwg*8)); a("s_cbranch_scc1 L_end")
                a("s_sub_u32 s48, s%d, s90"%(92 if diag<0 else 86)); a("s_lshl_b32 s48, s48, 2")
                if dmode==1: a("s_mov_b32 s48, 5000")
                if dmode>=2: a("s_mov_b32 s48, %d"%(dmode*3000)); a("s_mov_b32 s92, s90")
                a.lab("L_spin")
                a("s_memrealtime s[60:61]"); a("s_waitcnt lgkmcnt(0)")
                a("s_sub_u32 s49, s60, s92"); a("s_cmp_lt_u32 s49, s48"); a("s_cbranch_scc1 L_spin")
            return
        a("s_mov_b32 s44, s14"); a("s_mov_b32 s45, s15"); a("s_mov_b32 s46, 0x10000000"); a("s_mov_b32 s47, 0x20000")
        for i in range(14):
            if i<nst[0]: a("s_sub_u32 s%d, s%d, s88"%(60+2*i,60+2*i)); a("v_mov_b32 v%d, s%d"%(16+i,60+2*i))
            else: a("v_mov_b32 v%d, 0"%(16+i))
        a("v_mov_b32 v30, s90"); a("v_mov_b32 v31, s92")
        a("s_lshl_b32 s48, s2, 3"); a("s_add_u32 s48, s48, s50"); a("s_lshl_b32 s48, s48, 6")
        a("v_mov_b32 v12, s48")
        a("v_cmp_eq_u32 vcc, 0, v1")
        a("s_and_saveexec_b64 s[48:49], vcc")
        for i in range(4): a("buffer_store_dwordx4 v[%d:%d], v12, s[44:47], 0 offen offset:%d"%(16+4*i,19+4*i,16*i))

    VQ=2; VXA=[3,4,5,6]; VP=8; VW=9; VL=10; VSR=11; VSR2=12; VSO=15; VPF=16
    QS=[32,64]
    AD=96
    if pprio: a("s_setprio %d"%pprio)
    a("s_sub_u32 s51, s50, 4")
    a("v_lshrrev_b32 v12, 5, v1")
    a("s_mov_b32 s53, %d"%(8*18432))
    a("v_mul_lo_u32 v12, v12, s53")
    a("v_and_b32 v13, 31, v1")
    a("v_lshl_add_u32 v12, v13, 4, v12")
    a("s_lshl_b32 s39, s35, 9")
    a("s_mul_i32 s52, s51, %d"%(16*18432))
    a("s_add_u32 s39, s39, s52")
    a("v_add_u32 v%d, s39, v12"%VQ)
    SJ=[None]+[94+j for j in range(7)]
    for j in range(1,8): a("s_mov_b32 s%d, %d"%(SJ[j],j*18432))
    a("s_waitcnt lgkmcnt(0)")
    a("s_mov_b32 s20, s6"); a("s_mov_b32 s21, s7")
    a("s_mov_b32 s16, s4"); a("s_mov_b32 s17, s5")
    a("s_mov_b32 s24, s10"); a("s_mov_b32 s25, s11")
    def issue_q(st):
        L=[]
        for j in range(8):
            r=QS[st]+4*j
            L.append("buffer_load_dwordx4 v[%d:%d], v%d, s[20:23], %s offen"%(r,r+3,VQ,"0" if j==0 else "s%d"%SJ[j]))
        L.append("v_add_u32 v%d, %d, v%d"%(VQ,64*18432,VQ))
        return L
    for o in issue_q(0): a(o)
    a("v_lshlrev_b32 v%d, 2, v13"%VL)
    a("v_add_u32 v%d, %d, v%d"%(VL,LUT,VL))
    a("v_lshrrev_b32 v12, 3, v1")
    a("v_lshrrev_b32 v13, 1, v12")
    a("v_and_b32 v14, 7, v1")
    a("v_xor_b32 v13, v13, v14")
    a("v_lshlrev_b32 v13, 4, v13")
    a("s_movk_i32 s53, 1152")
    a("v_mul_lo_u32 v12, v12, s53")
    a("s_mul_i32 s52, s37, %d"%(16*1152))
    a("s_mul_i32 s55, s51, %d"%(XI*8*1152))
    a("s_add_u32 s55, s55, s52")
    for i in range(XI):
        if i&1: a("v_xor_b32 v14, 64, v13")
        else: a("v_mov_b32 v14, v13")
        a("v_add3_u32 v%d, v12, v14, s55"%VXA[i])
        if i: a("v_add_u32 v%d, %d, v%d"%(VXA[i],i*8*1152-(i%4)*1024,VXA[i]))
    a("s_mul_i32 s56, s51, %d"%(XI*1024))
    def issue_x(c):
        L=[]
        for i in range(XI):
            pre=""
            if i%4==0: pre="s_add_u32 m0, s56, %d\n s_movk_i32 s57, %d\n "%((c%3)*XS+i*1024,c*128)
            L.append(pre+"buffer_load_dwordx4 v%d, s[16:19], s57 offen offset:%d lds"%(VXA[i],(i%4)*1024))
        return L
    for o in issue_x(0): a(o)
    if codepf:
        a("s_getpc_b64 s[44:45]")
        a.lab("L_pc")
        a("s_and_b32 s46, s31, 3"); a("s_lshl_b32 s46, s46, 2"); a("s_add_u32 s46, s46, s51")
        a("s_mul_i32 s46, s46, %d"%(CPL*128))
        a("s_sub_u32 s44, s44, L_pc-%s"%KN); a("s_subb_u32 s45, s45, 0")
        a("s_add_u32 s44, s44, s46"); a("s_addc_u32 s45, s45, 0")
        for i in range(CPL): a("s_load_dword s33, s[44:45], %d"%(i*128))
    for o in issue_q(1): a(o)
    a("s_and_b32 s58, s51, 1"); a("s_lshl_b32 s59, s58, 6")
    a("v_xor_b32 v14, s59, v13")
    a("s_mul_i32 s55, s58, %d"%(8*1152))
    a("s_add_u32 s55, s55, s52")
    a("s_add_u32 s55, s55, %d"%(P*16*1152))
    a("s_lshr_b32 s32, s51, 1")
    a("s_mul_i32 s59, s32, %d"%(5*128))
    a("s_add_u32 s55, s55, s59")
    a("v_add3_u32 v%d, v12, v14, s55"%VP)
    a("s_lshl_b32 s58, s58, 10")
    a("s_mul_i32 s59, s32, %d"%(5*2048))
    a("s_add_u32 s58, s58, s59")
    lblc=[0]
    def issue_tile(t):
        L=[]
        lblc[0]+=1; lb="L_t%d"%lblc[0]
        L.append("s_cmp_lg_u32 s32, 0\n s_cbranch_scc1 %s\n s_add_u32 m0, s58, %d\n s_mov_b32 s57, %d\n buffer_load_dwordx4 v%d, s[16:19], s57 offen lds\n%s:"%(lb,tslot(t)+4*2048,4*128+t*18432,VP,lb))
        for c in range(4):
            L.append("s_add_u32 m0, s58, %d\n s_mov_b32 s57, %d\n buffer_load_dwordx4 v%d, s[16:19], s57 offen lds"%(tslot(t)+c*2048,c*128+t*18432,VP))
        return L
    a("v_bfe_u32 v12, v1, 3, 2")
    a("v_lshlrev_b32 v12, 11, v12")
    a("v_and_b32 v13, 7, v1")
    a("v_lshl_add_u32 v12, v13, 4, v12")
    a("v_lshrrev_b32 v13, 5, v1")
    a("v_lshl_add_u32 v12, v13, 8, v12")
    a("s_lshr_b32 s59, s51, 1"); a("s_lshl_b32 s59, s59, 13")
    a("s_and_b32 s55, s51, 1"); a("s_lshl_b32 s55, s55, 9")
    a("s_add_u32 s59, s59, s55"); a("s_add_u32 s59, s59, %d"%WS0)
    a("v_add_u32 v%d, s59, v12"%VW)
    a("s_lshl_b32 s59, s51, 10")
    a("v_lshlrev_b32 v12, 4, v1")
    a("v_add_u32 v%d, s59, v12"%VSR)
    a("v_lshrrev_b32 v13, 4, v1")
    a("s_movk_i32 s53, 9216")
    a("v_mul_lo_u32 v13, v13, s53")
    a("v_and_b32 v14, 15, v1")
    a("v_lshl_add_u32 v13, v14, 4, v13")
    a("s_lshl_b32 s59, s37, 4"); a("s_lshl_b32 s55, s51, 2"); a("s_add_u32 s59, s59, s55")
    a("s_mul_i32 s59, s59, 9216"); a("s_lshl_b32 s55, s35, 8"); a("s_add_u32 s59, s59, s55")
    a("v_add_u32 v%d, s59, v13"%VSO)
    a("v_add_u32 v%d, %d, v%d"%(VSR2,STG,VSR))
    if vpf:
        assert vpf*9<=64
        a("s_mul_i32 s55, s31, 9363"); a("s_lshr_b32 s55, s55, 16")
        a("s_lshl_b32 s59, s55, 2"); a("s_add_u32 s59, s59, s51")
        a("s_lshl_b32 s59, s59, 7")
        a("s_add_u32 s53, s37, %d"%(19-vpf)); a("s_mul_i32 s53, s53, 18432")
        a("s_add_u32 s59, s59, s53")
        a("s_cmp_ge_u32 s55, 4"); a("s_cselect_b32 s59, 0x10000000, s59")
        a("v_lshlrev_b32 v%d, 11, v1"%VPF)
        a("v_add_u32 v%d, s59, v%d"%(VPF,VPF))
        a("v_cmp_gt_u32 vcc, %d, v1"%(vpf*9))
        a("v_mov_b32 v14, 0x10000000")
        a("s_nop 1")
        a("v_cndmask_b32 v%d, v14, v%d, vcc"%(VPF,VPF))
    a("s_barrier")
    def dequant(st,wslot,inter,wbase,fine=False):
        Q=QS[st]
        if fine: stamp()
        for hf in range(2):
            a("s_waitcnt vmcnt(%d)"%(wbase+(4 if hf==0 else 0)))
            if fine: stamp()
            for pr in range(2):
                for e in range(4):
                    t=AD+8*hf+4*pr+e
                    a("v_lshl_add_u32 v%d, v%d, 7, v%d"%(t,Q+4*(4*hf+2*pr)+e,VL))
                for e in range(4):
                    t=AD+8*hf+4*pr+e
                    a("v_lshl_add_u32 v%d, v%d, 11, v%d"%(t,Q+4*(4*hf+2*pr+1)+e,t))
                for e in range(4):
                    t=AD+8*hf+4*pr+e
                    if hf==1 and pr==1 and e==3: a("s_waitcnt lgkmcnt(14)")
                    a("ds_read_b32 v%d, v%d"%(AD+16+4*e+2*hf+pr,t))
        if fine: stamp()
        for e in range(4):
            a("s_waitcnt lgkmcnt(3)")
            O=AD+16+4*e
            a("ds_write_b128 v%d, v[%d:%d] offset:%d"%(VW,O,O+3,wslot*16384+(e&1)*1024+(e>>1)*128))
        if fine: stamp()
        for o in inter: a(o)
        if fine: stamp()
    PFI="buffer_load_dword v20, v%d, s[16:19], 0 offen"%VPF
    vq=[]
    for c in range(-1,9):
        if c+2<=8:
            first=8
            if vpf and c==vpfc: a(PFI); first+=1
            if c>=0:
                for o in issue_q(c%2): a(o)
            inter=issue_x(c+2); second=XI
        elif c==7:
            for o in issue_tile(0): a(o)
            inter=issue_tile(1); first=4; second=4
            vq=[("t",0)]*4+[("t",1)]*4
            if vpf and vpfc==7: inter.append(PFI); second+=1; vq.append(("pf",))
        if c+1<=8:
            if c in (-1,0,3,7) and stamps and finec is None and finew is None:
                a("s_waitcnt vmcnt(%d)"%(XI+4+first)); stamp()
            dequant((c+1)%2,(c+1)%2,inter,XI+first,fine=(c==finec))
            a("s_waitcnt vmcnt(%d) lgkmcnt(0)"%(first+second))
            if c==finec: stamp()
            a("s_barrier")
            if (finec is None and c in (-1,0,3,7)) or (finec is not None and c in (finec-1,finec)): stamp()
    if pprio: a("s_setprio 0")
    twin={2:-1,3:-1}
    for t in range(4,NT2): twin[t]=max(0,t-xahead)
    if bsched is None: bsched=[2,1,1,1,1,1]
    assert sum(bsched)==P-1
    bl=0
    for u in range(-1,NT2+1):
        fw=finew is not None and finew<=u<finew+3
        if u==NT2:
            pass
        items=[]
        if u>=1: items.append((VSR2,((u-1)&1)*4096,P+u-2))
        if 0<=u<len(bsched):
            for _ in range(bsched[u]): items.append((VSR,bl*4096,bl)); bl+=1
        for i,(r,off,t) in enumerate(items):
            a("ds_read_b128 v[%d:%d], v%d offset:%d"%(128+4*i,131+4*i,r,off))
        for t,w in twin.items():
            if w==u:
                if t==NT2-1:
                    a("s_cmp_ge_u32 s36, 2"); a("s_cbranch_scc1 L_nolast")
                    for o in issue_tile(t): a(o)
                    a.lab("L_nolast")
                    vq.append(("mark",t))
                else:
                    for o in issue_tile(t): a(o)
                    vq+= [("t",t)]*4
        if vpf and vpfc-9==u: a(PFI); vq.append(("pf",))
        if fw: stamp(True)
        for i,(r,off,t) in enumerate(items):
            a("s_waitcnt lgkmcnt(%d)"%(len(items)-1-i))
            if not nostore:
                a("s_mov_b32 s54, %d"%(t*16*9216))
                a("buffer_store_dwordx4 v[%d:%d], v%d, s[24:27], s54 offen %s"%(128+4*i,131+4*i,VSO,stflags)); vq.append(("s",t))
        if fw: stamp(True)
        if u==NT2-1:
            a("s_cmp_ge_u32 s36, 2"); a("s_cbranch_scc1 L_p_done")
        if u<NT2:
            t=u+1
            idx=[i for i,x in enumerate(vq) if x in (("t",t),("mark",t))]
            if idx:
                n=len([x for x in vq[idx[-1]+1:] if x[0]!="mark"])
                a("s_waitcnt vmcnt(%d)"%n); del vq[:idx[-1]+1]
            if fw: stamp(True)
            a("s_barrier")
            if finew is not None and finew-1<=u<finew+3: stamp(True)
            if u in (-1,1,3,5,7): stamp()
    a.lab("L_p_done")
    if stamps: a("s_waitcnt vmcnt(0)"); stamp()
    stamp_out("p")
    a("s_endpgm")

    if alignc: a(".p2align 8")
    a.lab("L_cons")
    nst[0]=0; role[0]="c"
    XA0,XA1,WA,SC0,SC1=2,3,4,5,6
    XL0=7
    OA=[8,9,10,11]
    SG=12; SG2=13
    XB0=16
    ACC0=XB0+4*NX1
    W0=112
    assert ACC0+P*8<=W0
    def wreg(s,t): r=W0+(2*s+t)*4; return "v[%d:%d]"%(r,r+3)
    def xb(i): r=XB0+4*(i%NX1); return "v[%d:%d]"%(r,r+3)
    def xb2(i): r=XB0+4*(i%NX2); return "v[%d:%d]"%(r,r+3)
    def accr(slot): return ACC0+slot*8
    def acc(slot,t): r=accr(slot)+4*t; return "v[%d:%d]"%(r,r+3)
    assert XB0+4*NX2<=accr(P-2)
    if cprio: a("s_setprio %d"%cprio)
    a("v_and_b32 v16, 15, v1")
    a("v_lshrrev_b32 v17, 4, v1")
    a("s_lshl_b32 s39, s35, 8")
    a("s_lshl_b32 s51, s50, 6")
    a("s_add_u32 s39, s39, s51")
    a("v_lshlrev_b32 v14, 2, v16")
    a("v_add_u32 v14, s39, v14")
    HA,HB=xor_tables([v>>8 for v in T16]); LA,LB=xor_tables([v&255 for v in T16])
    tabs=[dw(HA[:4]),dw(HA[4:]),dw(HB[:4]),dw(HB[4:]),dw(LA[:4]),dw(LA[4:]),dw(LB[:4]),dw(LB[4:])]
    TB=32
    for i,t in enumerate(tabs): a("v_mov_b32 v%d, 0x%08x"%(TB+i,t))
    a("v_lshrrev_b32 v40, 4, v0")
    a("v_lshl_or_b32 v40, v40, 8, v16")
    a("v_xor_b32 v41, 0x0808, v40")
    a("v_perm_b32 v42, v%d, v%d, v40"%(TB+1,TB))
    a("v_perm_b32 v43, v%d, v%d, v41"%(TB+3,TB+2))
    a("v_perm_b32 v44, v%d, v%d, v40"%(TB+5,TB+4))
    a("v_perm_b32 v45, v%d, v%d, v41"%(TB+7,TB+6))
    a("v_xor_b32 v42, v42, v43")
    a("v_xor_b32 v44, v44, v45")
    a("s_mov_b32 s28, 0x05010400")
    a("v_perm_b32 v48, v42, v44, s28")
    a("v_mov_b32 v49, v48"); a("v_mov_b32 v50, v48"); a("v_mov_b32 v51, v48")
    a("v_and_b32 v46, 7, v0")
    a("v_lshlrev_b32 v46, 4, v46")
    a("v_lshl_add_u32 v46, v0, 7, v46")
    a("v_add_u32 v46, %d, v46"%LUT)
    assert LUT%128==0
    a("s_waitcnt lgkmcnt(0)")
    a("s_mov_b32 s40, s8"); a("s_mov_b32 s41, s9")
    a("s_mov_b32 s24, s10"); a("s_mov_b32 s25, s11")
    a("buffer_load_dword v15, v14, s[40:43], 0 offen")
    for j in range(8):
        if j: a("v_xor_b32 v47, %d, v46"%(16*j))
        a("ds_write_b128 v%d, v[48:51]"%(47 if j else 46))
    a("v_lshrrev_b32 v52, 1, v16")
    a("v_xor_b32 v52, v52, v17")
    a("v_lshlrev_b32 v52, 4, v52")
    a("v_lshl_add_u32 v%d, v16, 7, v52"%XA0)
    a("v_xor_b32 v%d, 64, v%d"%(XA1,XA0))
    a("v_mov_b32 v%d, v%d"%(XL0,XA0))
    a("v_and_b32 v52, 1, v16")
    a("v_lshlrev_b32 v52, 3, v52")
    a("v_lshl_add_u32 v52, v17, 4, v52")
    a("v_lshrrev_b32 v%d, 1, v16"%WA)
    a("v_add_u32 v52, v52, v%d"%WA)
    a("s_lshl_b32 s51, s50, 11")
    a("s_add_u32 s51, s51, %d"%WS0)
    a("v_lshlrev_b32 v52, 4, v52")
    a("v_add_u32 v%d, s51, v52"%WA)
    a("s_cmp_lt_u32 s36, 2")
    a("s_cselect_b32 s55, %d, %d"%(NT2,NT2-1))
    a("s_add_u32 s52, s37, s55")
    a("s_add_u32 s52, s52, %d"%(P-1))
    a("s_mul_i32 s52, s52, %d"%(16*9216))
    a("s_mov_b32 s53, %d"%(4*9216))
    a("v_mul_lo_u32 v52, v17, s53")
    a("v_add3_u32 v%d, v52, v14, s52"%OA[0])
    for r in range(1,4): a("v_add_u32 v%d, %d, v%d"%(OA[r],9216*r,OA[0]))
    a("s_lshl_b32 s51, s50, 6")
    a("v_lshlrev_b32 v52, 10, v17")
    a("v_lshl_add_u32 v52, v16, 2, v52")
    a("v_add_u32 v%d, s51, v52"%SG)
    a("v_add_u32 v%d, %d, v%d"%(SG2,STG,SG))
    a("s_mov_b32 s56, %d"%tslot(0))
    a("s_waitcnt lgkmcnt(0)")
    a("s_barrier")
    a("s_waitcnt vmcnt(0)")
    a("v_lshlrev_b32 v%d, 16, v15"%SC0)
    a("v_and_b32 v%d, 0xffff0000, v15"%SC1)
    def cvt_ops(slot):
        b=accr(slot); ops=[]
        for r in range(4):
            ops.append("v_mul_f32 v%d, v%d, v%d"%(b+r,b+r,SC0))
            ops.append("v_mul_f32 v%d, v%d, v%d"%(b+4+r,b+4+r,SC1))
        for r in range(4):
            ops.append("v_cvt_pk_bf16_f32 v%d, v%d, v%d"%(b+r,b+r,b+4+r))
        return ops,b
    def stage_ops(slot,reg,i):
        ops,b=cvt_ops(slot)
        for r in (0,2):
            ops.append("ds_write2st64_b32 v%d, v%d, v%d offset0:%d offset1:%d"%(reg,b+r,b+r+1,i*16+r,i*16+r+1))
        return ops
    for c in range(9):
        a("s_barrier")
        if (c in (0,1,4,8) and not fine8) or (fine8 and c==8): stamp()
        xs=(c%3)*XS; ws=(c%2)*16384
        if c<8: items=[(s,t) for s in range(2) for t in range(P)]
        else: items=[(s,t) for t in range(P) for s in range(2)]
        q=[]
        def rdw(s,t):
            a("ds_read_b128 %s, v%d offset:%d"%(wreg(2*c+s,t),WA,ws+(s*8+t)*1024)); q.append(("w",s,t))
        def rdx(n):
            s,t=items[n]
            a("ds_read_b128 %s, v%d offset:%d"%(xb(n),XA1 if s else XA0,xs+t*2048)); q.append(("x",n))
        if c<8:
            rdw(0,0); rdx(0); rdw(0,1)
            for n in range(1,NX1): rdx(n)
            rdw(1,0); rdw(1,1)
        else:
            rdw(0,0); rdx(0); rdw(0,1); rdw(1,0); rdx(1); rdw(1,1)
            for n in range(2,NX1): rdx(n)
        fill=[]
        def em(o):
            if nodumpw and o.startswith("ds_write"): return
            a(o)
            if o.startswith("ds_write"): q.append(("sw",))
        for n,(s,t) in enumerate(items):
            need=[("x",n),("w",s,0),("w",s,1)]
            last=max([q.index(x) for x in need if x in q]+[-1])
            if last>=0:
                a("s_waitcnt lgkmcnt(%d)"%(len(q)-1-last)); del q[:last+1]
            if c==8 and s==0 and fine8: stamp()
            if c==8 and s==0 and t>=2: fill+=stage_ops(t-2,SG,t-2)
            for tt in range(2):
                src="0" if (c==0 and s==0) else acc(t,tt)
                if c==8 and t==2 and s==0 and tt==0: a("s_nop 3")
                a("v_mfma_f32_16x16x32_bf16 %s, %s, %s, %s"%(acc(t,tt),xb(n),wreg(2*c+s,tt),src))
                for _ in range(4 if tt==0 else 3):
                    if fill: em(fill.pop(0))
            if n+NX1<len(items): rdx(n+NX1)
        if c==8:
            fill+=stage_ops(P-2,SG,P-2)
            if fine8: stamp()
            for o in fill: em(o)
            if fine8: stamp()
            a("v_add_u32 v%d, s56, v%d"%(XA0,XL0))
            a("v_xor_b32 v%d, 64, v%d"%(XA1,XA0))
            a("s_waitcnt lgkmcnt(0)")
    assert RING%128==0
    stamp()
    a("s_barrier")
    stamp()
    SL=[P-2,P-1]
    def rd(n36):
        u,k=divmod(n36,18)
        a("ds_read_b128 %s, v%d offset:%d"%(xb2(n36),XA1 if k&1 else XA0,u*18432+(k>>1)*2048))
    LA=NX2-lag
    for n in range(LA): rd(n)
    a.lab("L_loop")
    q=list(range(LA))
    for hf in range(2):
        slot=SL[hf]
        fill=stage_ops(SL[1-hf],SG2,hf)
        kb=18-LA
        def fl(cnt):
            for _ in range(cnt):
                if fill:
                    o=fill.pop(0); a(o)
                    if o.startswith("ds_write"): q.append("w")
        def doread(k,n):
            if k==kb:
                assert not fill
                if "w" in q:
                    last=len(q)-1-q[::-1].index("w")
                    a("s_waitcnt lgkmcnt(%d)"%(len(q)-1-last)); del q[:last+1]
                a("s_barrier")
            nn=n+LA
            rd(nn%36); q.append(nn)
            if k==kb-1 and hf==1:
                a("v_add_u32 v%d, s56, v%d"%(XA0,XL0))
        for k in range(18):
            n=hf*18+k
            if n in q:
                tgt=n
                for d in range(1,wstep):
                    if n+d in q: tgt=n+d
                last=q.index(tgt)
                a("s_waitcnt lgkmcnt(%d)"%(len(q)-1-last)); del q[:last+1]
            src="0" if k==0 else acc(slot,0)
            a("v_mfma_f32_16x16x32_bf16 %s, %s, %s, %s"%(acc(slot,0),xb2(n),wreg(k,0),src))
            if lag:
                doread(k,n)
                if k>=2: fl(1)
            else:
                if k>=2: fl(2)
            src="0" if k==0 else acc(slot,1)
            a("v_mfma_f32_16x16x32_bf16 %s, %s, %s, %s"%(acc(slot,1),xb2(n),wreg(k,1),src))
            nextwait=(n+1) in q
            if lag:
                if k>=2 or (k==1): fl(1 if nextwait else 2)
            else:
                if k>=2 and not nextwait: fl(1)
                doread(k,n)
            if hf==1:
                if k==0: a("s_add_u32 s56, s56, 36864"); a("s_cmp_ge_u32 s56, %d"%(RING+3*36864))
                if k==0: a("s_cselect_b32 s56, %d, s56"%RING)
                if k==kb-1: a("v_xor_b32 v%d, 64, v%d"%(XA1,XA0))
            if k==16: a("s_sub_u32 s55, s55, 1")
            if k==17: a("s_cmp_lg_u32 s55, 0")
        a("s_cbranch_scc1 %s"%("L_half" if hf==0 else "L_loop"))
        sv=nst[0]
        a("s_nop 6")
        ops,b=cvt_ops(slot)
        for o in ops: a(o)
        if not nostore:
            for r in range(4): a("buffer_store_dword v%d, v%d, s[24:27], 0 offen %s"%(b+r,OA[r],lastflags))
        if stamps: a("s_branch L_c_done")
        else: a("s_endpgm")
        if hf==0: a.lab("L_half")
    qq=[x-36 for x in q]
    assert qq==list(range(LA))[-len(qq):], qq
    a.lab("L_c_done")
    if stamps:
        stamp(); a("s_waitcnt vmcnt(0)"); stamp(); stamp_out("c")
    a.lab("L_end")
    body=a.txt()
    hdr=open("standalone__normalfloat_lut_nf4__prompt.s.ref").read().split("; Override launch")[0]
    s=hdr+f"""; @launch grid=(252,1,1) block=(512,1,1) lds={LDS}
.amdgcn_target "amdgcn-amd-amdhsa--gfx950"
.text
.globl {KN}
.p2align 8
.type {KN},@function
{KN}:
{body}s_endpgm
.fill ({KN}+{16*CPL*128}-.)/4, 4, 0xbf810000
.section .rodata,"a"
.p2align 6
.amdhsa_kernel {KN}
  .amdhsa_next_free_vgpr 256
  .amdhsa_next_free_sgpr 102
  .amdhsa_accum_offset 256
  .amdhsa_group_segment_fixed_size 0
  .amdhsa_kernarg_size 48
  .amdhsa_user_sgpr_count 2
  .amdhsa_user_sgpr_kernarg_segment_ptr 1
  .amdhsa_system_sgpr_workgroup_id_x 1
.end_amdhsa_kernel
"""
    return s,LDS
if __name__=="__main__":
    import build
    def mk(name,**kw):
        s,l=gen(**kw)
        open(name+".s","w").write(s); build.build(name+".s",name+".co")
        print(name,"LDS",l,"barriers",s.count("s_barrier"))
    for arg in sys.argv[1:]:
        name,_,kws=arg.partition(":")
        kw=eval("dict(%s)"%kws)
        mk(name,**kw)
```
